```python
import torch

def _softmax(x, axis=-1):
    return torch.softmax(x, dim=axis)

def _gelu(x):
    return torch.nn.functional.gelu(x, approximate='tanh')

def _silu(x):
    return torch.nn.functional.silu(x)

def _sigmoid(x):
    return torch.sigmoid(x)

def _layernorm(x, axis=-1, eps=1e-05):
    m = x.mean(dim=axis, keepdim=True)
    v = x.var(dim=axis, keepdim=True, unbiased=False)
    return (x - m) / torch.sqrt(v + eps)

def _scatter_add(tgt, idx, src, axis=0):
    return tgt.clone().index_add_(axis, idx, src)

def _segment_sum(src, seg, n):
    out = torch.zeros((n,) + src.shape[1:], dtype=src.dtype)
    return out.index_add_(0, seg, src)

def _pad(x, pw):
    flat = tuple((v for pair in reversed(pw) for v in pair))
    return torch.nn.functional.pad(x, flat)
kernel_name = 'adaLN_cond__sliding_block_cached__mixer_gmlp__prompt'

def setup_inputs():

    _w = lambda a: (lambda t: t.to(torch.bfloat16) if t.is_floating_point() else t)(torch.as_tensor(a))

    def _A_setup():
        B, Sq, D = (1, 2048, 448)
        Hq, Hkv, Sk, Dh = (16, 8, 2048, 256)
        assert Hq % Hkv == 0, (Hq, Hkv)
        return {'x': _w((lambda *s: torch.randn(*s, dtype=torch.bfloat16) * 0.1)(B, Sq, D)), 'k_cache': _w((lambda *s: torch.randn(*s, dtype=torch.bfloat16) * 0.8)(B, Hkv, Sk, Dh)), 'v_cache': _w((lambda *s: torch.randn(*s, dtype=torch.bfloat16) * 1.6)(B, Hkv, Sk, Dh)), 'wq': _w((lambda *s: torch.randn(*s, dtype=torch.bfloat16) * 0.8)(D, Hq * Dh) * D ** (-0.5)), 'wo': _w((lambda *s: torch.randn(*s, dtype=torch.bfloat16) * 1.6)(Hq * Dh, D) * (Hq * Dh) ** (-0.5))}
    _A_in = _A_setup()

    def _B_setup():
        B, S, D, F = (1, 2048, 448, 1792)
        Fh = F // 2
        return {'x': _w((lambda *s: torch.randn(*s, dtype=torch.bfloat16) * 0.1)(B, S, D)), 'w_in': _w((lambda *s: torch.randn(*s, dtype=torch.bfloat16) * 1.6)(D, 2 * Fh)), 'w_sp': _w(0.01 * (lambda *s: torch.randn(*s, dtype=torch.bfloat16) * 1.6)(S, S)), 'b_sp': _w(1.0 + 0.01 * (lambda *s: torch.randn(*s, dtype=torch.bfloat16) * 0.2)(S)), 'w_out': _w((lambda *s: torch.randn(*s, dtype=torch.bfloat16) * 0.2)(Fh, D))}
    _B_in = _B_setup()
    return {'A_x': _A_in['x'], 'A_k_cache': _A_in['k_cache'], 'A_v_cache': _A_in['v_cache'], 'A_wq': _A_in['wq'], 'A_wo': _A_in['wo'], 'B_x': _B_in['x'], 'B_w_in': _B_in['w_in'], 'B_w_sp': _B_in['w_sp'], 'B_b_sp': _B_in['b_sp'], 'B_w_out': _B_in['w_out'], 'c': _w((lambda *s: torch.randn(*s, dtype=torch.bfloat16) * 0.8)(1, 448) * 8.0), 'w_mod': _w((lambda *s: torch.randn(*s, dtype=torch.bfloat16) * 0.8)(448, 6 * 448) * 448 ** (-0.5) * 8.0)}

def reference(A_x, A_k_cache, A_v_cache, A_wq, A_wo, B_x, B_w_in, B_w_sp, B_b_sp, B_w_out, c, w_mod):

    def _A_ref(x, k_cache, v_cache, wq, wo):
        B, Sq, D = x.shape
        Hq, Dh = (16, 256)
        Hkv, Sk = (k_cache.shape[1], k_cache.shape[2])
        W = min(4096, max(256, Sk // 4))
        rep = Hq // Hkv
        q = (lambda x, *d: x.permute(*d))((x @ wq).reshape(B, Sq, Hq, Dh), 0, 2, 1, 3)
        k = (lambda x, n, axis: torch.repeat_interleave(x, n, dim=axis))(k_cache[:, :, Sk - W:, :], rep, axis=1)
        v = (lambda x, n, axis: torch.repeat_interleave(x, n, dim=axis))(v_cache[:, :, Sk - W:, :], rep, axis=1)
        scores = torch.einsum('bhqd,bhkd->bhqk', q, k) * Dh ** (-0.5)
        p = _softmax(scores, axis=-1)
        o = torch.einsum('bhqk,bhkd->bhqd', p, v)
        return (lambda x, *d: x.permute(*d))(o, 0, 2, 1, 3).reshape(B, Sq, Hq * Dh) @ wo

    def _B_ref(x, w_in, w_sp, b_sp, w_out):
        B, S, D = x.shape
        F = w_in.shape[-1]
        Fh = F // 2
        z = _gelu(torch.einsum('bsd,df->bsf', x, w_in))
        z1 = z[..., :Fh].clone()
        z2 = _layernorm(z[..., Fh:], axis=-1)
        g = torch.einsum('ts,bsf->btf', w_sp, z2) + b_sp[None, :, None]
        return torch.einsum('bsf,fd->bsd', z1 * g, w_out)
    x = A_x
    mod = (_silu(c) @ w_mod).reshape(c.shape[0], 6, 1, -1)
    sa, ca, ga, sb, cb, gb = (mod[:, 0].clone(), mod[:, 1].clone(), mod[:, 2].clone(), mod[:, 3].clone(), mod[:, 4].clone(), mod[:, 5].clone())
    h = _layernorm(x, axis=-1) * (1 + ca) + sa
    x = x + ga * _A_ref(h, A_k_cache, A_v_cache, A_wq, A_wo)
    h = _layernorm(x, axis=-1) * (1 + cb) + sb
    x = x + gb * _B_ref(h, B_w_in, B_w_sp, B_b_sp, B_w_out)
    return x
```

```python
import re

REG_RE = re.compile(r'^(-|abs\()?([vas])(\d+)\)?$')
RNG_RE = re.compile(r'^(-|abs\()?([vas])\[(\d+):(\d+)\]\)?$')

def regs_of(tok):
    tok = tok.strip()
    m = REG_RE.match(tok)
    if m: return [(m.group(2), int(m.group(3)))]
    m = RNG_RE.match(tok)
    if m: return [(m.group(2), i) for i in range(int(m.group(3)), int(m.group(4)) + 1)]
    if tok in ("vcc",): return [("vcc", 0)]
    if tok in ("exec",): return [("exec", 0)]
    if tok == "m0": return [("m0", 0)]
    return []

TRANS = ("v_exp_f32", "v_log_f32", "v_rcp_f32", "v_rsq_f32", "v_sqrt_f32", "v_sin_f32", "v_cos_f32")

class Ins:
    __slots__ = ("text", "op", "kind", "dst", "src", "tag", "cost", "srcC", "wide")
    def __init__(self, text, tag=None):
        self.text = text.strip()
        self.tag = tag
        self.srcC = []
        self.wide = False
        t = self.text
        if t.endswith(":"):
            self.op = "label"; self.kind = "label"; self.dst = []; self.src = []; self.cost = 0; return
        if t.startswith(".") or t.startswith(";"):
            self.op = "dir"; self.kind = "dir"; self.dst = []; self.src = []; self.cost = 0; return
        parts = t.split(None, 1)
        op = parts[0]; self.op = op
        rest = parts[1] if len(parts) > 1 else ""
        bm = re.findall(r'\s(?:op_sel|op_sel_hi|neg_lo|neg_hi|quad_perm):\[[^\]]*\]', rest)
        rest = re.sub(r'\s(?:op_sel|op_sel_hi|neg_lo|neg_hi|quad_perm):\[[^\]]*\]', '', rest)
        ops = [o.strip() for o in rest.split(",")] if rest else []
        mods = ""
        if ops:
            last = ops[-1].split(None, 1)
            ops[-1] = last[0]
            mods = last[1] if len(last) > 1 else ""
        mods += " ".join(bm)
        R = [regs_of(o) for o in ops]
        flat = lambda L: [r for x in L for r in x]
        self.cost = 4
        if op.startswith("PSEUDO"):
            self.kind = "pseudo"; self.dst = []; self.src = []; self.cost = 0
        elif op.startswith("v_mfma"):
            self.kind = "mfma32" if "32x32" in op else "mfma16"
            self.dst = R[0]; self.src = flat(R[1:]); self.srcC = R[3]
            self.cost = 8
        elif op.startswith("ds_read") or op.startswith("ds_bpermute") or op.startswith("ds_swizzle"):
            self.kind = "dsr"; self.dst = R[0]; self.src = flat(R[1:])
        elif op.startswith("ds_write"):
            self.kind = "dsw"; self.dst = []; self.src = flat(R)
        elif op.startswith("buffer_load") or op.startswith("global_load"):
            if " lds" in (" " + mods) or "_lds_" in op:
                self.kind = "dma"; self.dst = []; self.src = flat(R) + [("m0", 0)]
            else:
                self.kind = "vload"; self.dst = R[0]; self.src = flat(R[1:])
        elif op.startswith("buffer_store") or op.startswith("global_store"):
            self.kind = "vstore"; self.dst = []; self.src = flat(R)
            self.wide = op.endswith("x4") or op.endswith("x3")
            self.srcC = R[0] if op.startswith("buffer") else R[1]
        elif op.startswith("buffer_atomic") or op.startswith("global_atomic"):
            if "sc0" in mods:
                self.kind = "vload"; self.dst = R[0]; self.src = flat(R)
            else:
                self.kind = "vstore"; self.dst = []; self.src = flat(R)
        elif op.startswith("buffer_wbl2") or op.startswith("buffer_inv"):
            self.kind = "vstore"; self.dst = []; self.src = []
        elif op.startswith("s_load") or op.startswith("s_buffer_load") or op.startswith("s_memtime") or op.startswith("s_memrealtime"):
            self.kind = "smem"; self.dst = R[0]; self.src = flat(R[1:])
        elif op == "s_waitcnt":
            self.kind = "wait"; self.dst = []; self.src = []
        elif op == "s_barrier":
            self.kind = "barrier"; self.dst = []; self.src = []
        elif op == "s_nop":
            self.kind = "nop"; self.dst = []; self.src = []
        elif op.startswith("s_cbranch") or op == "s_branch":
            self.kind = "branch"; self.dst = []; self.src = []
        elif op in ("s_endpgm", "s_sleep", "s_setprio"):
            self.kind = "misc"; self.dst = []; self.src = []
        elif op.startswith("s_cmp"):
            self.kind = "salu"; self.dst = []; self.src = flat(R)
        elif op.startswith("s_"):
            self.kind = "salu"; self.dst = R[0]; self.src = flat(R[1:])
            if "saveexec" in op: self.dst = self.dst + [("exec", 0)]
            if op in ("s_addk_i32", "s_mulk_i32"): self.src = self.src + R[0]
        elif op.startswith("v_"):
            self.kind = "valu"
            self.dst = R[0]; self.src = flat(R[1:])
            if op.startswith("v_permlane") and "swap" in op:
                self.kind = "perm"; self.dst = R[0] + R[1]; self.src = R[0] + R[1]
            elif op.startswith("v_readfirstlane") or op.startswith("v_readlane"):
                self.kind = "rfl"
            elif op.startswith("v_fmac") or op.startswith("v_dot2c") or op.startswith("v_pk_fmac"):
                self.src = self.src + R[0]
            elif op.startswith("v_add_co") or op.startswith("v_addc_co") or op.startswith("v_sub_co"):
                self.dst = R[0] + R[1]; self.src = flat(R[2:])
            elif op.startswith("v_cmpx"):
                self.dst = R[0] + [("exec", 0)]
            if op.startswith("v_dot"): self.kind = "dot"
            base = op.replace("_e32", "").replace("_e64", "").replace("_dpp", "")
            if base in TRANS: self.kind = "trans"; self.cost = 8
            if "row_" in mods or "quad_perm" in mods or "_dpp" in op:
                self.kind = "dpp"
                if "bound_ctrl" not in mods: self.src = self.src + R[0]
        else:
            raise ValueError("unknown instr: " + t)
    def __repr__(self): return self.text

VALU_KINDS = ("valu", "trans", "perm", "rfl", "dpp", "dot")
VMEM_KINDS = ("vload", "vstore", "dma")

class Prog:
    def __init__(self):
        self.ins = []
    def __call__(self, text, tag=None):
        for ln in text.strip("\n").split("\n"):
            ln = ln.split("//")[0].strip()
            if ln: self.ins.append(Ins(ln, tag))
    def add(self, i): self.ins.append(i)
    def wait_vm(self, tag): self.ins.append(Ins("PSEUDO_WAITVM", tag))
    def wait_lgkm(self, tag): self.ins.append(Ins("PSEUDO_WAITLGKM", tag))
    def wait_all(self): self("s_waitcnt vmcnt(0) lgkmcnt(0)")

def parse_wait(text):
    vm = re.search(r'vmcnt\((\d+)\)', text); lg = re.search(r'lgkmcnt\((\d+)\)', text)
    return (int(vm.group(1)) if vm else None, int(lg.group(1)) if lg else None)

def insert_waits(ins, lookahead=0):
    out = []
    vq = []
    lq = []
    def need(q, regs):
        n = None
        for p, e in enumerate(q):
            if e[0] & regs: n = len(q) - 1 - p
        return n
    def emit(vm, lg):
        nonlocal vq, lq
        if lg is not None and any(e[2] for e in lq): lg = 0
        if vm is not None and vm >= len(vq): vm = None
        if lg is not None and lg >= len(lq): lg = None
        if vm is not None and vm > 63: vm = None if False else 63
        if lg is not None and lg > 15: lg = 15
        if vm is None and lg is None: return
        s = "s_waitcnt"
        if vm is not None: s += " vmcnt(%d)" % vm; vq = vq[len(vq) - vm:] if vm else []
        if lg is not None: s += " lgkmcnt(%d)" % lg; lq = lq[len(lq) - lg:] if lg else []
        if out and out[-1].kind == "wait" and out[-1].tag == "auto":
            pv, pl = parse_wait(out[-1].text)
            out.pop()
            vm2 = vm if pv is None else (pv if vm is None else min(pv, vm))
            lg2 = lg if pl is None else (pl if lg is None else min(pl, lg))
            s = "s_waitcnt" + ("" if vm2 is None else " vmcnt(%d)" % vm2) + ("" if lg2 is None else " lgkmcnt(%d)" % lg2)
        out.append(Ins(s, "auto"))
    n = len(ins)
    for idx, i in enumerate(ins):
        if i.kind == "pseudo":
            if i.op == "PSEUDO_WAITVM":
                k = None
                for p, e in enumerate(vq):
                    if e[1] == i.tag or (isinstance(i.tag, (set, frozenset, list, tuple)) and not isinstance(e[1], (list,set)) and e[1] in i.tag): k = len(vq) - 1 - p
                emit(k, None)
            elif i.op == "PSEUDO_WAITLGKM":
                k = None
                for p, e in enumerate(lq):
                    if e[1] == i.tag: k = len(lq) - 1 - p
                emit(None, k)
            continue
        if i.kind == "wait":
            vm, lg = parse_wait(i.text)
            if vm is not None: vq = vq[len(vq) - vm:] if (vm and vm < len(vq)) else ([] if vm == 0 else vq)
            if lg is not None: lq = lq[len(lq) - lg:] if (lg and lg < len(lq)) else ([] if lg == 0 else lq)
            out.append(i); continue
        if i.kind in ("label", "branch"):
            if i.tag != "nowait": emit(0 if vq else None, 0 if lq else None)
            out.append(i); continue
        if i.op == "s_endpgm":
            vq = []; lq = []; out.append(i); continue
        regs = set(i.src) | set(i.dst)
        vm = need(vq, regs); lg = need(lq, regs)
        if lg is not None and lookahead and i.kind in ("mfma32", "mfma16"):
            cnt = 0
            for j in range(idx + 1, min(n, idx + 40)):
                if ins[j].kind in ("mfma32", "mfma16"):
                    l2 = need(lq, set(ins[j].src))
                    if l2 is not None and l2 >= 2: lg = min(lg, l2)
                    cnt += 1
                    if cnt >= lookahead: break
        emit(vm, lg)
        out.append(i)
        if i.kind == "vload": vq.append((set(i.dst), i.tag))
        elif i.kind in ("vstore", "dma"): vq.append((set(), i.tag))
        elif i.kind == "dsr": lq.append((set(i.dst), i.tag, False))
        elif i.kind == "dsw": lq.append((set(), i.tag, False))
        elif i.kind == "smem": lq.append((set(i.dst), i.tag, True))
    return out

def states(i):
    if i.kind == "nop": return int(i.text.split()[1], 0) + 1
    if i.kind in ("label", "dir", "pseudo"): return 0
    return 1

def hazard_need(p, c):
    pd = set(p.dst); cs = set(c.src); cd = set(c.dst)
    n = 0
    pv = p.kind in VALU_KINDS
    cv = c.kind in VALU_KINDS
    cm = c.kind in ("mfma32", "mfma16")
    if pv:
        sg = {r for r in pd if r[0] in ("s", "vcc")}
        vg = {r for r in pd if r[0] in ("v", "a")}
        if sg & cs:
            if c.kind in VMEM_KINDS: n = max(n, 5)
            if cv: n = max(n, 4 if c.kind == "rfl" else 2)
        if vg & cs:
            if c.kind == "dpp" or c.kind == "perm": n = max(n, 2)
            if c.kind == "rfl": n = max(n, 1)
            if p.kind == "trans" and cv and c.kind != "trans": n = max(n, 1)
            if cm: n = max(n, 2)
        if p.kind == "dot" and (vg & (cs | cd)) and not (c.op == p.op and not (vg & set(c.src[:-1]) )): n = max(n, 3)
        if ("exec", 0) in pd:
            if c.kind == "dpp": n = max(n, 5)
            if cm or c.kind in ("rfl", "perm"): n = max(n, 4)
    if p.kind == "salu" and ("m0", 0) in pd and c.kind == "dma": n = max(n, 1)
    if p.kind == "vstore" and p.wide and (set(p.srcC) & cd): n = max(n, 2 if cv else 1)
    if p.kind in ("mfma32", "mfma16"):
        big = p.kind == "mfma32"
        if cm:
            cc = set(c.srcC); ab = set(c.src[:8])
            if pd & ab: n = max(n, 12 if big else 8)
            if pd & cc and not (list(p.dst) == list(c.srcC) and p.kind == c.kind): n = max(n, 10 if big else 6)
        elif cv:
            if pd & (cs | cd): n = max(n, 12 if big else 8)
            if set(p.srcC) & cd: n = max(n, 7 if big else 3)
        elif c.kind in VMEM_KINDS or c.kind in ("dsr", "dsw"):
            if pd & (cs | cd): n = max(n, 12 if big else 8)
    return n

def insert_nops(ins):
    out = []
    total = 0
    for c in ins:
        if c.kind in ("label", "dir", "pseudo"):
            out.append(c); continue
        need = 0
        dist = 0
        for p in reversed(out):
            if dist >= 12: break
            if c.kind == "branch" and c.tag != "nowait":
                h = 12 if p.kind == "mfma32" else 8 if p.kind == "mfma16" else 5 if (p.kind in VALU_KINDS) else 0
            else:
                h = hazard_need(p, c)
            if h - dist > need: need = h - dist
            dist += states(p)
        if need > 0:
            total += need
            while need > 0:
                k = min(need, 16)
                out.append(Ins("s_nop %d" % (k - 1), "haz"))
                need -= k
        out.append(c)
    return out, total

class Module:
    def __init__(self):
        self.kernels = []
        self.launches = []
    def kernel(self, name, prog, vgpr, agpr=0, sgpr=102, lookahead=0):
        ins = insert_waits(prog.ins, lookahead)
        ins, nn = insert_nops(ins)
        self.kernels.append((name, ins, vgpr, agpr, sgpr))
        return ins, nn
    def launch(self, name, grid, block, lds): self.launches.append((name, grid, block, lds))
    def text(self, header=""):
        out = []
        if header: out.append(header.rstrip("\n"))
        for (n, g, b, l) in self.launches:
            out.append("; @launch kernel=%s grid=(%d,1,1) block=(%d,1,1) lds=%d" % (n, g, b, l))
        out.append('.amdgcn_target "amdgcn-amd-amdhsa--gfx950"')
        out.append(".text")
        for (n, ins, v, a, s) in self.kernels:
            out += [".globl %s" % n, ".p2align 8", ".type %s,@function" % n, "%s:" % n]
            for i in ins:
                out.append(i.text if i.kind == "label" else " " + i.text)
        out.append('.section .rodata,"a"')
        for (n, ins, v, a, s) in self.kernels:
            acc = (v + 3) // 4 * 4
            out += [".p2align 6", ".amdhsa_kernel %s" % n,
                    "  .amdhsa_next_free_vgpr %d" % (acc + a if a else v),
                    "  .amdhsa_next_free_sgpr %d" % s,
                    "  .amdhsa_accum_offset %d" % acc,
                    "  .amdhsa_group_segment_fixed_size 0",
                    "  .amdhsa_kernarg_size 120",
                    "  .amdhsa_user_sgpr_count 2",
                    "  .amdhsa_user_sgpr_kernarg_segment_ptr 1",
                    "  .amdhsa_system_sgpr_workgroup_id_x 1",
                    ".end_amdhsa_kernel"]
        return "\n".join(out) + "\n"

def srd(p, d, base, nbytes):
    p("s_mov_b32 s%d, s%d" % (d, base))
    p("s_mov_b32 s%d, s%d" % (d + 1, base + 1))
    p("s_mov_b32 s%d, 0x%x" % (d + 2, nbytes))
    p("s_mov_b32 s%d, 0x00020000" % (d + 3))

def vr(b, n=1, f="v"):
    return "%s%d" % (f, b) if n == 1 else "%s[%d:%d]" % (f, b, b + n - 1)
def ar(b, n=1): return vr(b, n, "a")
```

```python
from fw import *
from layout import *

def gen_k0():
    p = Prog()
    NMOD, NLN = 84, 64
    p("s_cmp_ge_u32 s2, %d" % (NMOD + NLN + 1))
    p("s_cbranch_scc1 K0_END")
    p("s_load_dwordx2 s[4:5], s[0:1], %d" % A_WS)
    p("s_cmp_ge_u32 s2, %d" % NMOD)
    p("s_cbranch_scc1 K0_LN", "nowait")
    p("s_load_dwordx2 s[6:7], s[0:1], %d" % A_C)
    p("s_load_dwordx2 s[8:9], s[0:1], %d" % A_WMOD)
    p("v_lshrrev_b32 v1, 2, v0")
    p("v_and_b32 v2, 3, v0")
    p("v_mul_u32_u24 v3, 5376, v1")
    p("v_lshl_add_u32 v3, v2, 4, v3")
    p("v_lshlrev_b32 v4, 1, v1")
    p("s_lshl_b32 s10, s2, 6")
    srd(p, 12, 6, 896)
    srd(p, 16, 8, 448 * 5376)
    srd(p, 20, 4, WS_END)
    for m in range(7):
        p("buffer_load_ushort v%d, v4, s[12:15], 0 offen offset:%d" % (8 + m, m * 128))
    for m in range(7):
        p("buffer_load_dwordx4 v[%d:%d], v3, s[16:19], s10 offen" % (16 + 4 * m, 19 + 4 * m))
        if m < 6: p("s_add_u32 s10, s10, %d" % (64 * 5376))
    p("s_mov_b32 s11, 0xbfb8aa3b")
    for m in range(7):
        p("v_lshlrev_b32 v%d, 16, v%d" % (8 + m, 8 + m))
    for m in range(7):
        p("v_mul_f32 v%d, s11, v%d" % (48 + m, 8 + m))
    for m in range(7):
        p("v_exp_f32 v%d, v%d" % (48 + m, 48 + m))
    for m in range(7):
        p("v_add_f32 v%d, 1.0, v%d" % (48 + m, 48 + m))
    for m in range(7):
        p("v_rcp_f32 v%d, v%d" % (48 + m, 48 + m))
    for m in range(7):
        p("v_mul_f32 v%d, v%d, v%d" % (8 + m, 8 + m, 48 + m))
    for m in range(7):
        p("v_cvt_pk_bf16_f32 v%d, v%d, v%d" % (8 + m, 8 + m, 8 + m))
    for m in range(7):
        p("v_lshlrev_b32 v%d, 16, v%d" % (8 + m, 8 + m))
    for m in range(7):
        for d in range(4):
            w = 16 + 4 * m + d
            p("v_lshlrev_b32 v64, 16, v%d" % w)
            p("v_and_b32 v65, 0xffff0000, v%d" % w)
            if m == 0:
                p("v_mul_f32 v%d, v64, v8" % (56 + 2 * d))
                p("v_mul_f32 v%d, v65, v8" % (57 + 2 * d))
            else:
                p("v_fmac_f32 v%d, v64, v%d" % (56 + 2 * d, 8 + m))
                p("v_fmac_f32 v%d, v65, v%d" % (57 + 2 * d, 8 + m))
    for sh in (4, 8):
        for e in range(8):
            p("v_add_f32_dpp v%d, v%d, v%d row_ror:%d row_mask:0xf bank_mask:0xf" % (56 + e, 56 + e, 56 + e, sh))
    p("v_lshrrev_b32 v5, 4, v0")
    p("v_lshlrev_b32 v5, 7, v5")
    p("v_lshl_add_u32 v5, v2, 5, v5")
    p("v_and_b32 v6, 12, v0")
    p("v_cmp_eq_u32 vcc, 0, v6")
    p("s_and_saveexec_b64 s[24:25], vcc")
    p("ds_write_b128 v5, v[56:59]")
    p("ds_write_b128 v5, v[60:63] offset:16")
    p("s_mov_b64 exec, s[24:25]")
    p("s_waitcnt lgkmcnt(0)")
    p("s_barrier")
    p("v_cmp_gt_u32 vcc, 32, v0")
    p("s_and_saveexec_b64 s[24:25], vcc")
    p("s_cbranch_execz K0_END")
    p("v_lshlrev_b32 v5, 2, v0")
    for r in range(16):
        p("ds_read_b32 v%d, v5 offset:%d" % (16 + r, r * 128))
    for r in range(1, 16):
        p("v_add_f32 v16, v16, v%d" % (16 + r))
    p("v_cvt_pk_bf16_f32 v16, v16, v16")
    p("v_lshlrev_b32 v16, 16, v16")
    p("s_mov_b32 s26, 0")
    for lo in (14, 56):
        p("s_sub_u32 s27, s2, %d" % lo)
        p("s_cmp_lt_u32 s27, 14")
        p("s_cselect_b32 s26, 1.0, s26")
    p("v_add_f32 v16, s26, v16")
    p("v_cvt_pk_bf16_f32 v16, v16, v16")
    p("v_lshlrev_b32 v16, 16, v16")
    p("s_lshl_b32 s10, s2, 7")
    p("buffer_store_dword v16, v5, s[20:23], s10 offen offset:%d" % MOD)
    p("s_endpgm")
    p("K0_LN:", "nowait")
    p("s_load_dwordx2 s[6:7], s[0:1], %d" % A_X)
    p("s_waitcnt lgkmcnt(0)")
    srd(p, 20, 4, WS_END)
    p("s_cmp_eq_u32 s2, %d" % (NMOD + NLN))
    p("s_cbranch_scc1 K0_ZERO")
    srd(p, 12, 6, 2048 * 896)
    p("s_sub_u32 s10, s2, %d" % NMOD)
    p("s_mul_i32 s10, s10, %d" % (32 * 896))
    p("v_lshrrev_b32 v1, 3, v0")
    p("v_and_b32 v2, 7, v0")
    p("v_mul_u32_u24 v3, 896, v1")
    p("v_lshl_add_u32 v3, v2, 4, v3")
    for m in range(7):
        p("buffer_load_dwordx4 v[%d:%d], v3, s[12:15], s10 offen offset:%d" % (4 + 4 * m, 7 + 4 * m, m * 128))
    p("s_sub_u32 s24, s2, %d" % NMOD)
    p("s_lshl_b32 s24, s24, 12")
    p("s_add_u32 s24, s24, %d" % STATS)
    p("v_lshlrev_b32 v88, 4, v0")
    for i in range(4): p("v_mov_b32 v%d, -1" % (92 + i))
    p("buffer_store_dwordx4 v[92:95], v88, s[20:23], s24 offen")
    ln_core(p, src=4, dst=32, tmp=90)
    for d in range(28):
        p("v_cvt_pk_bf16_f32 v%d, v%d, v%d" % (4 + d, 32 + 2 * d, 33 + 2 * d))
    p("s_add_u32 s10, s10, %d" % XN)
    for m in range(7):
        p("buffer_store_dwordx4 v[%d:%d], v3, s[20:23], s10 offen offset:%d" % (4 + 4 * m, 7 + 4 * m, m * 128))
    p("s_endpgm")
    p("K0_ZERO:")
    p("v_lshlrev_b32 v1, 5, v0")
    for i in range(4): p("v_mov_b32 v%d, 0" % (4 + i))
    p("s_mov_b32 s10, %d" % FLAGS)
    p("buffer_store_dwordx4 v[4:7], v1, s[20:23], s10 offen")
    p("buffer_store_dwordx4 v[4:7], v1, s[20:23], s10 offen offset:16")
    p("K0_END:", "nowait")
    p("s_endpgm")
    return p, NMOD + NLN + 1

def red8(p, r, t):
    p("v_add_f32_dpp v%d, v%d, v%d quad_perm:[1,0,3,2] row_mask:0xf bank_mask:0xf" % (r, r, r))
    p("v_add_f32_dpp v%d, v%d, v%d quad_perm:[2,3,0,1] row_mask:0xf bank_mask:0xf" % (r, r, r))
    p("v_add_f32_dpp v%d, v%d, v%d row_half_mirror row_mask:0xf bank_mask:0xf" % (r, r, r))

def ln_core(p, src, dst, tmp):
    for d in range(28):
        p("v_lshlrev_b32 v%d, 16, v%d" % (dst + 2 * d, src + d))
        p("v_and_b32 v%d, 0xffff0000, v%d" % (dst + 2 * d + 1, src + d))
    t = tmp
    p("v_pk_add_f32 v[%d:%d], v[%d:%d], v[%d:%d]" % (t, t + 1, dst, dst + 1, dst + 2, dst + 3))
    for d in range(2, 28):
        p("v_pk_add_f32 v[%d:%d], v[%d:%d], v[%d:%d]" % (t, t + 1, t, t + 1, dst + 2 * d, dst + 2 * d + 1))
    p("v_add_f32 v%d, v%d, v%d" % (t, t, t + 1))
    red8(p, t, None)
    p("v_mul_f32 v%d, 0x%08x, v%d" % (t, f2u(-1.0 / 448), t))
    p("v_mov_b32 v%d, v%d" % (t + 1, t))
    for d in range(28):
        p("v_pk_add_f32 v[%d:%d], v[%d:%d], v[%d:%d]" % (dst + 2 * d, dst + 2 * d + 1, dst + 2 * d, dst + 2 * d + 1, t, t + 1))
    p("v_pk_mul_f32 v[%d:%d], v[%d:%d], v[%d:%d]" % (t + 2, t + 3, dst, dst + 1, dst, dst + 1))
    for d in range(1, 28):
        p("v_pk_fma_f32 v[%d:%d], v[%d:%d], v[%d:%d], v[%d:%d]" % (t + 2, t + 3, dst + 2 * d, dst + 2 * d + 1, dst + 2 * d, dst + 2 * d + 1, t + 2, t + 3))
    p("v_add_f32 v%d, v%d, v%d" % (t + 2, t + 2, t + 3))
    red8(p, t + 2, None)
    p("v_mov_b32 v%d, 0x%08x" % (t + 3, f2u(1e-5)))
    p("v_fmac_f32 v%d, 0x%08x, v%d" % (t + 3, f2u(1.0 / 448), t + 2))
    p("v_rsq_f32 v%d, v%d" % (t + 2, t + 3))
    p("v_mov_b32 v%d, v%d" % (t + 3, t + 2))
    for d in range(28):
        p("v_pk_mul_f32 v[%d:%d], v[%d:%d], v[%d:%d]" % (dst + 2 * d, dst + 2 * d + 1, dst + 2 * d, dst + 2 * d + 1, t + 2, t + 3))

import struct
def f2u(x): return struct.unpack("<I", struct.pack("<f", x))[0]
```

```python
from fw import *
from layout import *
from sched import *
from k0 import f2u
import math

SLOT = 17408
NSLOT = 8
XBASE = NSLOT * SLOT
H1BASE = 6 * SLOT
H1STRIDE = 912
LDS_BYTES = 163840
PIB = [0, 2, 1, 3, 4, 6, 5, 7]

V_TRJ, V_TR, V_KB = 1, 4, 7
V_WQ, V_K, V_V, V_WO = 10, 14, 15, 16
V_XW, V_XR, V_L16 = 17, 18, 19
V_MAX, V_NMC, V_SUM, V_RCP, V_T = 20, 21, 22, 26, 27
QACC = 32
A_H1, A_Q, A_FR, A_S67 = 0, 128, 192, 224
A_O = 0
A_PO = 128
OACC = 32
OBF = 144
NB = 8
S_W, S_G, S_TB = 3, 4, 5
SRD_WQ, SRD_K, SRD_V, SRD_WO, SRD_WS = 8, 12, 16, 20, 24
S_OWQ, S_OK, S_OV, S_OWO, S_M1088, S_M1040, S_C, S_OST, S_JMP = 28, 29, 30, 31, 32, 33, 34, 35, 38

def s_tile(t):
    if t < 6: return ("v", 160 + 16 * t)
    if t < 8: return ("a", A_S67 + 16 * (t - 6))
    return ("v", 32 + 16 * (t - 8))

def win(addr):
    w = addr // (3 * SLOT)
    return w, addr - w * 3 * SLOT

def gen_k1(D=4, budget=24, dbg=None):
    p = Prog()
    p("s_cmp_ge_u32 s2, 256")
    p("s_cbranch_scc1 K1_END")
    p("s_load_dwordx2 s[40:41], s[0:1], %d" % A_WS)
    p("s_load_dwordx4 s[44:47], s[0:1], %d" % A_K)
    p("s_load_dwordx4 s[48:51], s[0:1], %d" % A_WQ)
    p("v_lshrrev_b32 v27, 6, v0")
    p("v_and_b32 v0, 63, v0")
    p("v_readfirstlane_b32 s%d, v27" % S_W)
    p("s_and_b32 s%d, s2, 7" % S_G)
    p("s_lshr_b32 s%d, s2, 3" % S_TB)
    p("v_lshlrev_b32 v%d, 4, v0" % V_L16)
    p("s_lshl_b32 s6, s%d, 6" % S_TB)
    p("s_lshl_b32 s7, s%d, 4" % S_W)
    p("s_add_u32 s6, s6, s7")
    p("s_mul_i32 s6, s6, 896")
    p("s_add_u32 s6, s6, %d" % XN)
    p("v_lshlrev_b32 v28, 5, v0")
    srd(p, SRD_WS, 40, WS_END)
    XR = 32
    CST = 96
    p("buffer_load_dwordx4 v[%d:%d], v28, s[24:27], 0 offen offset:%d" % (CST, CST + 3, MOD))
    p("buffer_load_dwordx4 v[%d:%d], v28, s[24:27], 0 offen offset:%d" % (CST + 4, CST + 7, MOD + 16))
    p("buffer_load_dwordx4 v[%d:%d], v28, s[24:27], 0 offen offset:%d" % (CST + 8, CST + 11, MOD + 1792))
    p("buffer_load_dwordx4 v[%d:%d], v28, s[24:27], 0 offen offset:%d" % (CST + 12, CST + 15, MOD + 1792 + 16))
    for r in range(16):
        if r and r % 4 == 0: p("s_add_u32 s6, s6, %d" % (4 * 896))
        p("buffer_load_dwordx4 v[%d:%d], v%d, s[24:27], s6 offen offset:%d" % (XR + 4 * r, XR + 4 * r + 3, V_L16, (r % 4) * 896))
    srd(p, SRD_WQ, 48, 448 * 8192)
    srd(p, SRD_K, 44, 8388608)
    srd(p, SRD_V, 46, 8388608)
    srd(p, SRD_WO, 50, 4096 * 896)
    p("v_lshrrev_b32 v27, 5, v0")
    p("v_and_b32 v29, 31, v0")
    p("v_lshlrev_b32 v30, 4, v29")
    p("v_lshl_add_u32 v%d, v27, 16, v30" % V_WQ)
    for e in range(1, 4):
        p("v_add_u32 v%d, %d, v%d" % (V_WQ + e, e * 8192, V_WQ))
    p("v_lshl_add_u32 v%d, v27, 13, v30" % V_K)
    p("v_lshl_add_u32 v%d, v27, 12, v30" % V_V)
    p("v_min_u32 v31, 27, v29")
    p("v_mul_u32_u24 v%d, 7168, v27" % V_WO)
    p("v_lshl_add_u32 v%d, v31, 4, v%d" % (V_WO, V_WO))
    p("s_and_b32 s6, s%d, 1" % S_W)
    p("s_lshr_b32 s7, s%d, 1" % S_W)
    p("s_lshl_b32 s%d, s6, 15" % S_OWQ)
    p("s_lshl_b32 s36, s%d, 10" % S_G)
    p("s_add_u32 s%d, s%d, s36" % (S_OWQ, S_OWQ))
    p("s_lshl_b32 s36, s7, 9")
    p("s_add_u32 s%d, s%d, s36" % (S_OWQ, S_OWQ))
    p("s_lshl_b32 s36, s%d, 20" % S_G)
    p("s_add_u32 s36, s36, %d" % (1536 * 512))
    p("s_lshl_b32 s37, s%d, 11" % S_W)
    p("s_add_u32 s%d, s36, s37" % S_OK)
    p("s_lshl_b32 s37, s7, 13")
    p("s_add_u32 s%d, s36, s37" % S_OV)
    p("s_lshl_b32 s37, s6, 11")
    p("s_add_u32 s%d, s%d, s37" % (S_OV, S_OV))
    p("s_lshl_b32 s36, s%d, 9" % S_G)
    p("s_lshl_b32 s37, s7, 8")
    p("s_add_u32 s36, s36, s37")
    p("s_lshl_b32 s37, s6, 2")
    p("s_add_u32 s36, s36, s37")
    p("s_mul_i32 s%d, s36, 896" % S_OWO)
    p("s_mul_i32 s37, s7, 448")
    p("s_add_u32 s%d, s%d, s37" % (S_OWO, S_OWO))
    p("s_mul_i32 s%d, s7, %d" % (S_JMP, -512 * 896))
    p("s_add_u32 s%d, s%d, %d" % (S_JMP, S_JMP, 16 * 896))
    p("s_mul_i32 s%d, s%d, 4352" % (S_M1088, S_W))
    p("s_mul_i32 s%d, s%d, 4160" % (S_M1040, S_W))
    p("s_mov_b32 s%d, 0x%08x" % (S_C, f2u(math.log2(math.e) / 16)))

    slabs = [("Q", i) for i in range(28)] + [("K", i) for i in range(16)] + [("V", i) for i in range(16)] + [("W", i) for i in range(32)]
    NS = len(slabs)
    def slot_of(idx): return (idx % NSLOT) * SLOT
    def pieces(idx):
        kind, i = slabs[idx]
        so = slot_of(idx)
        out = []
        for e in range(4):
            pre = []
            if kind == "Q":
                if e == 0 and i > 0: pre.append("s_add_u32 s%d, s%d, %d" % (S_OWQ, S_OWQ, 131072))
                m0 = "s_add_u32 m0, s%d, %d" % (S_M1088, so + e * 1088)
                ld = "buffer_load_dwordx4 v%d, s[%d:%d], s%d offen lds" % (V_WQ + e, SRD_WQ, SRD_WQ + 3, S_OWQ)
            elif kind == "K":
                if e == 0 and i > 0: pre.append("s_add_u32 s%d, s%d, %d" % (S_OK, S_OK, 16384))
                m0 = "s_add_u32 m0, s%d, %d" % (S_M1040, so + e * (1040 - 512))
                ld = "buffer_load_dwordx4 v%d, s[%d:%d], s%d offen offset:%d lds" % (V_K, SRD_K, SRD_K + 3, S_OK, e * 512)
            elif kind == "V":
                if e == 0 and i > 0: pre.append("s_add_u32 s%d, s%d, %d" % (S_OV, S_OV, 16384))
                m0 = "s_add_u32 m0, s%d, %d" % (S_M1088, so + e * (1088 - 512))
                ld = "buffer_load_dwordx4 v%d, s[%d:%d], s%d offen offset:%d lds" % (V_V, SRD_V, SRD_V + 3, S_OV, e * 512)
            else:
                if e == 0 and i > 0:
                    if i == 16: pre.append("s_add_u32 s%d, s%d, s%d" % (S_OWO, S_OWO, S_JMP))
                    else: pre.append("s_add_u32 s%d, s%d, %d" % (S_OWO, S_OWO, 16 * 896))
                m0 = "s_add_u32 m0, s%d, %d" % (S_M1088, so + e * (1088 - 896))
                ld = "buffer_load_dwordx4 v%d, s[%d:%d], s%d offen offset:%d lds" % (V_WO, SRD_WO, SRD_WO + 3, S_OWO, e * 896)
            out.append((pre, m0, ld, ("slab", idx)))
        return out
    issued = 0
    for idx in range(6):
        for (pre, m0, ld, tag) in pieces(idx):
            for t in pre: p(t)
            p(m0); p("s_nop 0"); p(ld, tag)
    issued = 6

    p("v_bfe_u32 v27, v0, 2, 2")
    p("v_mul_u32_u24 v%d, 1088, v27" % V_TR)
    p("v_lshrrev_b32 v27, 5, v0")
    p("v_lshl_add_u32 v%d, v27, 9, v%d" % (V_TR, V_TR))
    p("v_and_b32 v27, 1, v0")
    p("v_lshlrev_b32 v27, 4, v27")
    p("v_and_b32 v28, 2, v0")
    p("v_lshl_add_u32 v27, v28, 2, v27")
    p("v_and_b32 v28, 16, v0")
    p("v_lshl_add_u32 v27, v28, 1, v27")
    p("v_add_u32 v%d, v%d, v27" % (V_TR, V_TR))
    p("s_and_b32 s6, s%d, 1" % S_W)
    p("s_mul_i32 s6, s6, %d" % (8 * 1088))
    p("v_add_u32 v%d, s6, v%d" % (V_TRJ, V_TR))
    p("v_and_b32 v27, 3, v0")
    p("v_and_b32 v28, 4, v0")
    p("v_lshl_add_u32 v27, v28, 1, v27")
    p("v_and_b32 v28, 8, v0")
    p("v_lshrrev_b32 v28, 1, v28")
    p("v_add_u32 v27, v27, v28")
    p("v_mul_u32_u24 v%d, 1040, v27" % V_KB)
    p("v_and_b32 v28, 16, v0")
    p("v_lshl_add_u32 v%d, v28, 5, v%d" % (V_KB, V_KB))
    p("v_lshrrev_b32 v28, 5, v0")
    p("v_lshl_add_u32 v%d, v28, 4, v%d" % (V_KB, V_KB))
    for base in (V_TRJ, V_TR, V_KB):
        p("v_add_u32 v%d, %d, v%d" % (base + 1, 3 * SLOT, base))
        p("v_add_u32 v%d, %d, v%d" % (base + 2, 6 * SLOT, base))
    p("s_lshl_b32 s6, s%d, 12" % S_W)
    p("s_add_u32 s6, s6, %d" % XBASE)
    p("v_add_u32 v%d, s6, v%d" % (V_XW, V_L16))
    p("v_xor_b32 v%d, 4096, v%d" % (V_XR, V_XW))
    p("s_lshr_b32 s6, s%d, 1" % S_W)
    p("s_lshl_b32 s7, s%d, 1" % S_TB)
    p("s_add_u32 s6, s6, s7")
    p("s_lshl_b32 s6, s6, 3")
    p("s_add_u32 s6, s6, s%d" % S_G)
    p("s_mul_i32 s%d, s6, 28672" % S_OST)
    p("s_and_b32 s6, s%d, 1" % S_W)
    p("s_mul_i32 s6, s6, %d" % (28 * 512))
    p("s_add_u32 s%d, s%d, s6" % (S_OST, S_OST))
    p("s_add_u32 s%d, s%d, %d" % (S_OST, S_OST, PART))
    p("s_mul_i32 s6, s%d, %d" % (S_W, 16 * H1STRIDE))
    p("s_add_u32 s6, s6, %d" % H1BASE)
    p("v_add_u32 v31, s6, v%d" % V_L16)
    p("s_mov_b32 s36, -1")
    p("s_mov_b32 s37, 0x00ffffff")
    p("s_mov_b64 exec, s[36:37]")
    T = 112
    for r in range(16):
        tb = T + (r % 2) * 12
        for d in range(4):
            p("v_lshlrev_b32 v%d, 16, v%d" % (tb + 2 * d, XR + 4 * r + d))
            p("v_and_b32 v%d, 0xffff0000, v%d" % (tb + 2 * d + 1, XR + 4 * r + d))
        for d in range(4):
            p("v_pk_fma_f32 v[%d:%d], v[%d:%d], v[%d:%d], v[%d:%d]" % (tb + 2 * d, tb + 2 * d + 1, tb + 2 * d, tb + 2 * d + 1, CST + 8 + 2 * d, CST + 9 + 2 * d, CST + 2 * d, CST + 1 + 2 * d))
        for d in range(4):
            p("v_cvt_pk_bf16_f32 v%d, v%d, v%d" % (tb + 8 + d, tb + 2 * d, tb + 2 * d + 1))
        p("ds_write_b128 v31, v[%d:%d] offset:%d" % (tb + 8, tb + 11, r * H1STRIDE), "h1w")
    p("s_mov_b64 exec, -1")
    p("s_lshr_b32 s6, s%d, 1" % S_W)
    p("s_mul_i32 s6, s6, %d" % (32 * H1STRIDE))
    p("s_add_u32 s6, s6, %d" % H1BASE)
    p("v_mul_u32_u24 v31, %d, v29" % H1STRIDE)
    p("v_lshrrev_b32 v27, 5, v0")
    p("v_lshl_add_u32 v31, v27, 4, v31")
    p("v_add_u32 v31, s6, v31")

    mf = []
    def tr_reads(basereg, addr):
        out = []
        for q in range(2):
            w, off = win(addr[0])
            out.append(("tr", basereg + w, off + addr[1] + 4 * q * 1088, q))
        return out
    order = [(ks, t) for ks in range(26) for t in range(8)] + [(ks, t) for t in range(8) for ks in (26, 27)]
    for (ks, t) in order:
        mf.append(dict(slab=ks, acc=("v", QACC + 16 * t), first=(ks == 0), B=("a", A_H1 + 4 * ks),
                       reads=tr_reads(V_TRJ, (slot_of(ks), 64 * t))))
    S0 = len(mf)
    for mt in range(16):
        for ks in range(16):
            idx = 28 + mt
            w, off = win(slot_of(idx))
            if mt < 5: B = ("v", QACC + 16 * (ks // 2) + 4 * (ks % 2))
            else: B = ("a", A_Q + 4 * ks)
            mf.append(dict(slab=idx, acc=s_tile(mt), first=(ks == 0), B=B, reads=[("b128", V_KB + w, off + 32 * ks, 0)]))
    P0 = len(mf)
    def p_frag(kk):
        t, hh = kk // 2, kk % 2
        f, b = s_tile(t)
        if f == "v": return b + 8 * hh
        return s_tile(1 + (t - 6))[1] + 4 + 8 * hh
    for kk in range(32):
        idx = 44 + kk // 2
        for t in range(8):
            mf.append(dict(slab=idx, acc=("a", A_O + 16 * t), first=(kk == 0), B=("v", p_frag(kk)),
                           reads=tr_reads(V_TR, (slot_of(idx), (8 * (kk % 2)) * 1088 + 64 * t))))
    W0 = len(mf)
    order = [(s, t) for s in range(30) for t in range(7)] + [(s, t) for t in range(7) for s in (30, 31)]
    for (s, t) in order:
        idx = 60 + s
        B = ("v", OBF + 4 * s) if s < 16 else ("a", A_PO + 4 * (s - 16))
        mf.append(dict(slab=idx, acc=("v", OACC + 16 * t), first=(s == 0), B=B,
                       reads=tr_reads(V_TRJ, (slot_of(idx), 64 * t))))
    N = len(mf)
    last_use = {}
    first_use = {}
    for n, m in enumerate(mf):
        last_use[m["slab"]] = n
        first_use.setdefault(m["slab"], n)

    sc = Sched(p, budget)
    for t in range(8):
        rdy = S0 - 16 + 2 * t + 1 + 3
        b = QACC + 16 * t
        for i in range(8):
            sc.filler("v_cvt_pk_bf16_f32 v%d, v%d, v%d" % (b + i, b + 2 * i, b + 2 * i + 1), rdy, S0 + 2 * t + (i // 4) - 1)
    qcopy = []
    for t in range(8):
        for i in range(8):
            qcopy.append("v_accvgpr_write_b32 a%d, v%d" % (A_Q + 8 * t + i, QACC + 16 * t + i))
    for mt in range(16):
        rdy = S0 + 16 * mt + 15 + 3
        if mt == 15: rdy = P0
        f, b = s_tile(mt)
        if mt < 4:
            for tx in qcopy[16 * mt:16 * mt + 16]:
                sc.filler(tx, S0 + 16 * mt, S0 + 16 * 5 - 1)
        if f == "v":
            vals = list(range(b, b + 16))
            if mt == 0:
                sc.filler("v_max3_f32 v%d, v%d, v%d, v%d" % (V_MAX, vals[0], vals[1], vals[2]), rdy, P0)
                sc.filler("v_max_f32 v%d, v%d, v%d" % (V_MAX, V_MAX, vals[3]), rdy, P0)
                vals = vals[4:]
            for i in range(0, len(vals), 2):
                sc.filler("v_max3_f32 v%d, v%d, v%d, v%d" % (V_MAX, V_MAX, vals[i], vals[i + 1]), rdy, P0)
        else:
            for i in range(0, 16, 2):
                sc.filler("v_accvgpr_read_b32 v%d, a%d" % (V_T, b + i), rdy, P0)
                sc.filler("v_accvgpr_read_b32 v%d, a%d" % (V_T + 1, b + i + 1), rdy, P0)
                sc.filler("v_max3_f32 v%d, v%d, v%d, v%d" % (V_MAX, V_MAX, V_T, V_T + 1), rdy, P0)
    for tx in ["v_mov_b32 v%d, v%d" % (V_T, V_MAX),
               "v_permlane32_swap_b32 v%d, v%d" % (V_MAX, V_T),
               "v_max_f32 v%d, v%d, v%d" % (V_MAX, V_MAX, V_T),
               "v_mul_f32 v%d, s%d, v%d" % (V_NMC, S_C, V_MAX)]:
        sc.filler(tx, P0, P0)
    for kk in range(32):
        t, hh = kk // 2, kk % 2
        f, b = s_tile(t)
        dl = P0 + 8 * kk - (0 if kk == 0 else 1)
        dst = p_frag(kk)
        if f == "v":
            vals = [b + 8 * hh + i for i in range(8)]
        else:
            t0 = s_tile(0)[1]
            vals = [t0 + 4 + i for i in range(4)] + [t0 + 12 + i for i in range(4)]
        for i in range(0, 8, 2):
            x, y = vals[i], vals[i + 1]
            if f == "a":
                sc.filler("v_accvgpr_read_b32 v%d, a%d" % (x, b + 8 * hh + i), P0 - 1, dl)
                sc.filler("v_accvgpr_read_b32 v%d, a%d" % (y, b + 8 * hh + i + 1), P0 - 1, dl)
            sc.filler("v_fma_f32 v%d, v%d, s%d, -v%d" % (x, x, S_C, V_NMC), P0 - 1, dl)
            sc.filler("v_fma_f32 v%d, v%d, s%d, -v%d" % (y, y, S_C, V_NMC), P0 - 1, dl)
            sc.filler("v_exp_f32 v%d, v%d" % (x, x), P0 - 1, dl)
            sc.filler("v_exp_f32 v%d, v%d" % (y, y), P0 - 1, dl)
            if kk == 0 and i == 0:
                sc.filler("v_mov_b32 v%d, v%d" % (V_SUM, x), P0 - 1, dl)
                sc.filler("v_mov_b32 v%d, v%d" % (V_SUM + 1, y), P0 - 1, dl)
            else:
                sc.filler("v_add_f32 v%d, v%d, v%d" % (V_SUM, V_SUM, x), P0 - 1, dl)
                sc.filler("v_add_f32 v%d, v%d, v%d" % (V_SUM + 1, V_SUM + 1, y), P0 - 1, dl)
            sc.filler("v_cvt_pk_bf16_f32 v%d, v%d, v%d" % (dst + i // 2, x, y), P0 - 1, dl)
    for tx in ["v_add_f32 v%d, v%d, v%d" % (V_SUM, V_SUM, V_SUM + 1),
               "v_mov_b32 v%d, v%d" % (V_T, V_SUM),
               "v_permlane32_swap_b32 v%d, v%d" % (V_SUM, V_T),
               "v_add_f32 v%d, v%d, v%d" % (V_SUM, V_SUM, V_T),
               "v_rcp_f32 v%d, v%d" % (V_RCP, V_SUM)]:
        sc.filler(tx, P0, W0)
    xw_pos = {}
    for s in range(16):
        t, hh = s // 2, s % 2
        rdy = W0 - 8 + t + 3
        if s < 4: rdy = max(rdy, W0 - 1)
        dl = W0 + 7 * s - (0 if s == 0 else 1)
        for i in range(0, 8, 2):
            x, y = V_T + (i // 2 % 2) * 2, V_T + (i // 2 % 2) * 2 + 1
            sc.filler("v_accvgpr_read_b32 v%d, a%d" % (x, A_O + 16 * t + 8 * hh + i), rdy, dl)
            sc.filler("v_accvgpr_read_b32 v%d, a%d" % (y, A_O + 16 * t + 8 * hh + i + 1), rdy, dl)
            sc.filler("v_mul_f32 v%d, v%d, v%d" % (x, x, V_RCP), rdy, dl)
            sc.filler("v_mul_f32 v%d, v%d, v%d" % (y, y, V_RCP), rdy, dl)
            sc.filler("v_cvt_pk_bf16_f32 v%d, v%d, v%d" % (OBF + 4 * s + i // 2, x, y), rdy, dl)
    for t in range(7):
        rdy = N - 14 + 2 * t + 1 + 3
        b = OACC + 16 * t
        for e in range(2):
            for i in range(4):
                sc.filler("v_cvt_pk_bf16_f32 v%d, v%d, v%d" % (b + 8 * e + i, b + 8 * e + 2 * i, b + 8 * e + 2 * i + 1), rdy)
            off = (4 * t + 2 * e) * 512
            if off and off % 4096 == 0: sc.filler("s_add_u32 s%d, s%d, 4096" % (S_OST, S_OST), rdy)
            sc.filler("buffer_store_dwordx4 v[%d:%d], v%d, s[24:27], s%d offen offset:%d" % (b + 8 * e, b + 8 * e + 3, V_L16, S_OST, off % 4096), rdy)

    certified = set()
    landed = set()
    dmaq = deque()
    extra = deque()
    state = dict(issued=6, xw=0, xr=0, xw_ok=0, nbar=0)
    def barrier(n, slab):
        p.wait_vm(("slab", min(slab + 1, NS - 1)))
        if state["nbar"] == 0: p.wait_lgkm("h1w")
        if state["nbar"] == 1: p.wait_lgkm("h1r")
        if n >= W0 - D - 1:
            if state["xw"]: p.wait_lgkm(("xw", state["xw"] - 1))
            if state["xr"]: p.wait_lgkm(("xr", state["xr"] - 1))
        p("s_barrier")
        state["nbar"] += 1
        landed.add(slab); landed.add(slab + 1)
        for s_, lu in last_use.items():
            if lu <= n: certified.add(s_)
        while state["issued"] < NS:
            k = state["issued"]
            if k >= NSLOT and (k - NSLOT) not in certified: break
            if k in (6, 7) and state["nbar"] < 2: break
            for pc in pieces(k): dmaq.append(pc)
            state["issued"] += 1
        if n >= W0 - D - 1:
            for f in range(state["xr"] + len([e for e in extra if e[1][0] == "xr"]), state["xw"]):
                extra.append(("ds_read_b128 a[%d:%d], v%d offset:%d" % (A_PO + 4 * f, A_PO + 4 * f + 3, V_XR, (f % 4) * 1024), ("xr", f)))
            state["xw_ok"] = min(16, state["xr"] + 4)
    def emit_reads(n, cur):
        m = mf[n]
        used = 0
        if m["slab"] not in landed:
            assert not dmaq or True
            while dmaq and dmaq[0][3][1] <= m["slab"] + 1:
                pre, m0, ld, tag = dmaq.popleft()
                for t in pre: p(t)
                p(m0); p("s_nop 0"); p(ld, tag)
            barrier(cur, m["slab"] - m["slab"] % 2)
            used += 8
            if cur < 0:
                for ks in range(28):
                    p("ds_read_b128 a[%d:%d], v31 offset:%d" % (A_H1 + 4 * ks, A_H1 + 4 * ks + 3, 32 * ks), "h1r")
        fb = A_FR + 4 * (n % NB)
        txt = []
        for (kind, reg, off, q) in m["reads"]:
            if kind == "tr": txt.append("ds_read_b64_tr_b16 a[%d:%d], v%d offset:%d" % (fb + 2 * q, fb + 2 * q + 1, reg, off))
            else: txt.append("ds_read_b128 a[%d:%d], v%d offset:%d" % (fb, fb + 3, reg, off))
        return txt, used
    for n in range(D):
        txt, _ = emit_reads(n, -1)
        for t in txt: p(t)
    obf_done = lambda n: sum(1 for s in range(16) if True)
    for n in range(N):
        m = mf[n]
        sc.flush_deadline(n)
        fb = A_FR + 4 * (n % NB)
        af, ab = m["acc"]; bf, bb = m["B"]
        acc = "%s[%d:%d]" % (af, ab, ab + 15)
        p("v_mfma_f32_32x32x16_bf16 %s, a[%d:%d], %s[%d:%d], %s" % (acc, fb, fb + 3, bf, bb, bb + 3, "0" if m["first"] else acc))
        used = 2
        txt = []
        if n + D < N:
            txt, u = emit_reads(n + D, n)
            used += u
        pc = None
        if dmaq and used < 8:
            pc = dmaq.popleft()
            for t in pc[0]: p(t); used += 4
            p(pc[1]); used += 4
        if txt:
            p(txt[0]); used += 4
        elif pc: p("s_nop 0")
        if pc:
            p(pc[2], pc[3]); used += 4
        for t in txt[1:]:
            p(t); used += 4
        if n >= W0 and state["xw"] < state["xw_ok"] and n >= W0 + 7 * state["xw"] and not pc:
            f = state["xw"]
            p("ds_write_b128 v%d, v[%d:%d] offset:%d" % (V_XW, OBF + 4 * f, OBF + 4 * f + 3, (f % 4) * 1024), ("xw", f))
            state["xw"] += 1; used += 8
        elif extra and not pc:
            t, tag = extra.popleft()
            p(t, tag); state["xr"] += 1; used += 4
        sc.fill_gap(n, used)
    sc.flush_all()
    assert state["xr"] == 16 and state["xw"] == 16, state
    assert not dmaq and state["issued"] == NS
    p("K1_END:", "nowait")
    p("s_endpgm")
    return p
```

```python
from k2a import *
from k2b import *
def add(m, opts, upto=99):
    m.kernel("k2a_kernel", gen_k2a(), vgpr=88)
    m.launch("k2a_kernel", 256, 448, 512)
    if upto >= 3:
        m.kernel("k2b_kernel", gen_k2b(**opts.get("k2b", {})), vgpr=168, agpr=144, lookahead=1)
        m.launch("k2b_kernel", 256, 256, LDS_K2B)
    if upto >= 4:
        import k3
        m.kernel("k3_kernel", k3.gen_k3(**opts.get("k3", {})), vgpr=248, agpr=88, lookahead=0)
        m.launch("k3_kernel", 256, 256, k3.LDS_K3)
    if upto >= 5:
        import k4
        m.kernel("k4_kernel", k4.gen_k4(**opts.get("k4", {})), vgpr=168, agpr=144, lookahead=0)
        m.launch("k4_kernel", 224, 256, k4.LDS_K4)
```

```python
from fw import *
from layout import *
from k0 import f2u

def gen_k2a():
    p = Prog()
    p("s_cmp_ge_u32 s2, 256")
    p("s_cbranch_scc1 K2A_END")
    p("s_load_dwordx2 s[4:5], s[0:1], %d" % A_WS)
    p("s_load_dwordx2 s[6:7], s[0:1], %d" % A_X)
    p("v_lshrrev_b32 v1, 3, v0")
    p("v_and_b32 v2, 7, v0")
    p("v_lshlrev_b32 v3, 9, v1")
    p("v_lshl_add_u32 v3, v2, 4, v3")
    p("v_mul_u32_u24 v4, 896, v2")
    p("v_lshl_add_u32 v4, v1, 4, v4")
    p("v_lshlrev_b32 v5, 5, v1")
    p("s_lshr_b32 s8, s2, 2")
    p("s_and_b32 s9, s2, 3")
    p("s_lshl_b32 s9, s9, 7")
    p("s_mul_i32 s10, s8, 229376")
    p("s_add_u32 s10, s10, s9")
    p("s_add_u32 s10, s10, %d" % PART)
    p("s_mul_i32 s11, s2, %d" % (8 * 896))
    srd(p, 12, 4, WS_END)
    srd(p, 16, 6, 2048 * 896)
    PD = 8
    for g in range(8):
        p("buffer_load_dwordx4 v[%d:%d], v3, s[12:15], s10 offen" % (PD + 4 * g, PD + 4 * g + 3))
        if g < 7: p("s_add_u32 s10, s10, 28672")
    XD = 40
    p("buffer_load_dwordx4 v[40:43], v4, s[16:19], s11 offen")
    GA, SB, C1 = 44, 52, 60
    p("s_movk_i32 s20, %d" % (MOD + 2 * 1792))
    for i, r in enumerate((GA, SB, C1)):
        for h in range(2):
            p("buffer_load_dwordx4 v[%d:%d], v5, s[12:15], s20 offen offset:%d" % (r + 4 * h, r + 4 * h + 3, i * 1792 + 16 * h))
    p("s_mul_i32 s21, s8, 28672")
    p("s_add_u32 s21, s21, s9")
    p("s_add_u32 s22, s21, %d" % H2)
    p("s_add_u32 s21, s21, %d" % X2)
    p("v_lshrrev_b32 v6, 6, v0")
    p("v_lshlrev_b32 v7, 3, v2")
    p("v_lshl_add_u32 v6, v6, 6, v7")
    ACC, T = 68, 76
    for g in range(8):
        for d in range(4):
            s = PD + 4 * g + d
            t = ACC + 2 * d if g == 0 else T + 2 * d
            p("v_lshlrev_b32 v%d, 16, v%d" % (t, s))
            p("v_and_b32 v%d, 0xffff0000, v%d" % (t + 1, s))
        if g:
            for d in range(4):
                p("v_pk_add_f32 v[%d:%d], v[%d:%d], v[%d:%d]" % (ACC + 2 * d, ACC + 2 * d + 1, ACC + 2 * d, ACC + 2 * d + 1, T + 2 * d, T + 2 * d + 1))
    for d in range(4):
        p("v_lshlrev_b32 v%d, 16, v%d" % (T + 2 * d, XD + d))
        p("v_and_b32 v%d, 0xffff0000, v%d" % (T + 2 * d + 1, XD + d))
    for d in range(4):
        p("v_pk_fma_f32 v[%d:%d], v[%d:%d], v[%d:%d], v[%d:%d]" % (ACC + 2 * d, ACC + 2 * d + 1, ACC + 2 * d, ACC + 2 * d + 1, GA + 2 * d, GA + 2 * d + 1, T + 2 * d, T + 2 * d + 1))
    for d in range(4):
        p("v_cvt_pk_bf16_f32 v%d, v%d, v%d" % (8 + d, ACC + 2 * d, ACC + 2 * d + 1))
    p("buffer_store_dwordx4 v[8:11], v3, s[12:15], s21 offen")
    for d in range(4):
        p("v_lshlrev_b32 v%d, 16, v%d" % (ACC + 2 * d, 8 + d))
        p("v_and_b32 v%d, 0xffff0000, v%d" % (ACC + 2 * d + 1, 8 + d))
    p("v_pk_add_f32 v[12:13], v[%d:%d], v[%d:%d]" % (ACC, ACC + 1, ACC + 2, ACC + 3))
    p("v_pk_mul_f32 v[14:15], v[%d:%d], v[%d:%d]" % (ACC, ACC + 1, ACC, ACC + 1))
    for d in range(1, 4):
        if d > 1: p("v_pk_add_f32 v[12:13], v[12:13], v[%d:%d]" % (ACC + 2 * d, ACC + 2 * d + 1))
        p("v_pk_fma_f32 v[14:15], v[%d:%d], v[%d:%d], v[14:15]" % (ACC + 2 * d, ACC + 2 * d + 1, ACC + 2 * d, ACC + 2 * d + 1))
    p("v_add_f32 v12, v12, v13")
    p("v_add_f32 v13, v14, v15")
    for r in (12, 13):
        p("v_add_f32_dpp v%d, v%d, v%d row_ror:8 row_mask:0xf bank_mask:0xf" % (r, r, r))
    for sw in ("v_permlane16_swap_b32", "v_permlane32_swap_b32"):
        p("v_mov_b32 v14, v12")
        p("v_mov_b32 v15, v13")
        p("%s v12, v14" % sw)
        p("%s v13, v15" % sw)
        p("v_add_f32 v12, v12, v14")
        p("v_add_f32 v13, v13, v15")
    p("ds_write_b64 v6, v[12:13]")
    p("s_waitcnt lgkmcnt(0)")
    p("s_barrier")
    for w in range(7):
        p("ds_read_b64 v[%d:%d], v7 offset:%d" % (16 + 2 * w, 17 + 2 * w, 64 * w))
    for w in range(1, 7):
        p("v_pk_add_f32 v[16:17], v[16:17], v[%d:%d]" % (16 + 2 * w, 17 + 2 * w))
    p("v_mul_f32 v16, 0x%08x, v16" % f2u(1.0 / 448))
    p("v_mov_b32 v18, 0x%08x" % f2u(1e-5))
    p("v_fmac_f32 v18, 0x%08x, v17" % f2u(1.0 / 448))
    p("v_fma_f32 v18, -v16, v16, v18")
    p("v_max_f32 v18, 0x%08x, v18" % f2u(1e-5))
    p("v_rsq_f32 v18, v18")
    p("v_mul_f32 v16, -1.0, v16")
    p("v_mov_b32 v17, v16")
    p("v_mov_b32 v19, v18")
    for d in range(4):
        p("v_pk_add_f32 v[%d:%d], v[%d:%d], v[16:17]" % (ACC + 2 * d, ACC + 2 * d + 1, ACC + 2 * d, ACC + 2 * d + 1))
        p("v_pk_mul_f32 v[%d:%d], v[%d:%d], v[18:19]" % (C1 + 2 * d, C1 + 2 * d + 1, C1 + 2 * d, C1 + 2 * d + 1))
    for d in range(4):
        p("v_pk_fma_f32 v[%d:%d], v[%d:%d], v[%d:%d], v[%d:%d]" % (ACC + 2 * d, ACC + 2 * d + 1, ACC + 2 * d, ACC + 2 * d + 1, C1 + 2 * d, C1 + 2 * d + 1, SB + 2 * d, SB + 2 * d + 1))
    for d in range(4):
        p("v_cvt_pk_bf16_f32 v%d, v%d, v%d" % (20 + d, ACC + 2 * d, ACC + 2 * d + 1))
    p("buffer_store_dwordx4 v[20:23], v3, s[12:15], s22 offen")
    p("K2A_END:", "nowait")
    p("s_endpgm")
    return p
```

```python
from fw import *
from layout import *
from sched import *
from k0 import f2u
import math

SLOT = 17408
XB = 8 * SLOT
H2L = 4 * SLOT
LDS_K2B = XB + 8192
C1 = -2.0 * math.sqrt(2.0 / math.pi) * math.log2(math.e)
C2 = C1 * 0.044715

def gelu_pair(x, t, SC):
    X = "v[%d:%d]" % (x, x + 1); T = "v[%d:%d]" % (t, t + 1)
    return ["v_pk_mul_f32 %s, %s, %s" % (T, X, X),
            "v_pk_fma_f32 %s, %s, s[%d:%d], v[%d:%d]" % (T, T, SC[0], SC[0] + 1, SC[1], SC[1] + 1),
            "v_pk_mul_f32 %s, %s, %s" % (T, T, X),
            "v_exp_f32 v%d, v%d" % (t, t),
            "v_exp_f32 v%d, v%d" % (t + 1, t + 1),
            "v_pk_add_f32 %s, %s, 1.0 op_sel_hi:[1,0]" % (T, T),
            "v_rcp_f32 v%d, v%d" % (t, t),
            "v_rcp_f32 v%d, v%d" % (t + 1, t + 1),
            "v_pk_mul_f32 %s, %s, %s" % (X, X, T)]

def interleave(seqs):
    out = []
    n = max(len(s) for s in seqs)
    for k in range(n):
        for s in seqs:
            if k < len(s): out.append(s[k])
    return out

def gen_k2b(D=4, budget=24):
    p = Prog()
    V_L16, V_G1, V_G2 = 1, 2, 6
    V_A1E, V_A1O, V_A2E, V_A2O, V_A2M = 9, 12, 15, 18, 21
    V_HE, V_HO, V_XW, V_XR, V_Z2, V_Z24, V_ST, V_PL = 24, 25, 26, 27, 28, 29, 30, 31
    ACC1, ACC2, ACC5 = 32, 64, 80
    TMP = 96
    V_C1 = 112
    V_SUM, V_SQ, V_SUMB, V_SQB = 114, 116, 118, 120
    PL = 124
    PK = 140
    V_SC, V_BI, V_SC4, V_BI4 = 156, 158, 160, 162
    A_H, A_FR, NB = 0, 112, 8
    S_W, S_FB, S_TB, S_C, S_I = 3, 4, 5, 6, 7
    SRD_WS, SRD_WI = 8, 12
    S_O1, S_O2, S_M1, S_M2, S_C2, S_MSK, S_Z1, S_Z2, S_STO, S_CM, S_CNT = 16, 17, 18, 19, 20, 22, 23, 24, 25, 26, 28
    p("s_cmp_ge_u32 s2, 256")
    p("s_cbranch_scc1 K2B_END")
    p("s_load_dwordx2 s[40:41], s[0:1], %d" % A_WS)
    p("s_load_dwordx2 s[42:43], s[0:1], %d" % A_WIN)
    p("v_lshrrev_b32 v96, 6, v0")
    p("v_and_b32 v0, 63, v0")
    p("v_readfirstlane_b32 s%d, v96" % S_W)
    p("s_and_b32 s30, s2, 7")
    p("s_lshl_b32 s30, s30, 2")
    p("s_lshr_b32 s31, s2, 6")
    p("s_add_u32 s%d, s30, s31" % S_TB)
    p("s_bfe_u32 s%d, s2, 0x30003" % S_FB)
    p("v_lshlrev_b32 v%d, 4, v0" % V_L16)
    p("s_and_b32 s%d, s%d, 1" % (S_C, S_W))
    p("s_lshr_b32 s%d, s%d, 1" % (S_I, S_W))
    srd(p, SRD_WS, 40, WS_END)
    p("s_mul_i32 s30, s%d, 14336" % S_W)
    p("s_mul_i32 s31, s%d, 57344" % S_TB)
    p("s_add_u32 s31, s31, s30")
    p("s_add_u32 s31, s31, %d" % H2)
    for e in range(14):
        if e % 4 == 0:
            if e: p("s_add_u32 s31, s31, 4096")
            p("s_add_u32 m0, s30, %d" % (H2L + 4096 * (e // 4)))
        p("buffer_load_dwordx4 v%d, s[8:11], s31 offen offset:%d lds" % (V_L16, (e % 4) * 1024), "h2")
    srd(p, SRD_WI, 42, 448 * 3584)
    p("v_lshrrev_b32 v96, 4, v0")
    p("v_mul_u32_u24 v%d, %d, v96" % (V_G1, 8 * 3584))
    p("v_and_b32 v97, 15, v0")
    p("v_lshlrev_b32 v98, 4, v97")
    p("v_add_u32 v99, 1792, v98")
    p("v_add_u32 v98, %d, v98" % (192 - 224))
    p("v_cmp_gt_u32 vcc, 14, v97")
    p("v_cndmask_b32 v98, v98, v99, vcc")
    p("v_add_u32 v%d, v%d, v98" % (V_G1, V_G1))
    for e in range(1, 4): p("v_add_u32 v%d, %d, v%d" % (V_G1 + e, e * 3584, V_G1))
    p("s_lshl_b32 s30, s%d, 5" % S_I)
    p("s_lshl_b32 s31, s%d, 2" % S_C)
    p("s_add_u32 s30, s30, s31")
    p("s_mul_i32 s%d, s30, 3584" % S_O1)
    p("s_mul_i32 s31, s%d, 224" % S_FB)
    p("s_add_u32 s%d, s%d, s31" % (S_O1, S_O1))
    p("s_mul_i32 s%d, s%d, %d" % (S_O2, S_W, 16 * 3584))
    p("s_add_u32 s%d, s%d, s31" % (S_O2, S_O2))
    p("s_mul_i32 s%d, s%d, 4352" % (S_M1, S_W))
    p("s_mul_i32 s%d, s%d, 3072" % (S_M2, S_W))
    NS = 14
    def slot_of(k): return (k % 8) * SLOT
    def pieces(k):
        out = []
        so = slot_of(k)
        if k < 7:
            for e in range(4):
                pre = ["s_add_u32 s%d, s%d, %d" % (S_O1, S_O1, 64 * 3584)] if (e == 0 and k > 0) else []
                out.append((pre, "s_add_u32 m0, s%d, %d" % (S_M1, so + e * 1088),
                            "buffer_load_dwordx4 v%d, s[12:15], s%d offen lds" % (V_G1 + e, S_O1), ("slab", k)))
        else:
            for e in range(3):
                pre = ["s_add_u32 s%d, s%d, %d" % (S_O2, S_O2, 64 * 3584)] if (e == 0 and k > 7) else []
                out.append((pre, "s_add_u32 m0, s%d, %d" % (S_M2, so + e * 1024),
                            "buffer_load_dwordx4 v%d, s[12:15], s%d offen lds" % (V_G2 + e, S_O2), ("slab", k)))
        return out
    for k in range(4):
        for (pre, m0, ld, tag) in pieces(k):
            for t in pre: p(t)
            p(m0); p(ld, tag)
    for e in range(3):
        p("v_add_u32 v96, %d, v0" % (64 * e))
        p("v_mul_u32_u24 v97, 171, v96")
        p("v_lshrrev_b32 v97, 11, v97")
        p("v_mul_u32_u24 v98, 12, v97")
        p("v_sub_u32 v98, v96, v98")
        p("v_mul_u32_u24 v97, 3584, v97")
        p("v_lshl_add_u32 v%d, v98, 4, v97" % (V_G2 + e))
    p("v_bfe_u32 v96, v0, 2, 2")
    p("v_lshrrev_b32 v97, 5, v0")
    p("v_and_b32 v98, 1, v0")
    p("v_bfe_u32 v99, v0, 1, 1")
    p("v_bfe_u32 v100, v0, 4, 1")
    p("v_mul_u32_u24 v101, 1088, v96")
    p("v_lshl_add_u32 v101, v97, 8, v101")
    p("v_lshl_add_u32 v101, v100, 5, v101")
    p("v_lshl_add_u32 v101, v98, 4, v101")
    p("v_lshl_add_u32 v101, v99, 3, v101")
    p("s_mul_i32 s30, s%d, %d" % (S_C, 128 + 512))
    p("v_add_u32 v%d, s30, v101" % V_A1E)
    p("s_mul_i32 s30, s%d, %d" % (S_C, 128 - 512))
    p("s_add_u32 s30, s30, 512")
    p("v_add_u32 v%d, s30, v101" % V_A1O)
    p("v_lshl_add_u32 v101, v97, 3, v96")
    p("v_mul_u32_u24 v101, 192, v101")
    p("v_lshl_add_u32 v101, v99, 5, v101")
    p("v_lshl_add_u32 v101, v98, 3, v101")
    p("v_lshl_add_u32 v102, v100, 4, v101")
    p("s_mul_i32 s30, s%d, %d" % (S_C, 128 + 3072))
    p("v_add_u32 v%d, s30, v102" % V_A2E)
    p("s_mul_i32 s30, s%d, %d" % (S_C, 128 - 3072))
    p("s_add_u32 s30, s30, 3072")
    p("v_add_u32 v%d, s30, v102" % V_A2O)
    p("v_xor_b32 v100, s%d, v100" % S_C)
    p("v_lshl_add_u32 v102, v100, 4, v101")
    p("s_mul_i32 s30, s%d, 3072" % S_C)
    p("s_add_u32 s30, s30, 64")
    p("v_add_u32 v%d, s30, v102" % V_A2M)
    for b in (V_A1E, V_A1O, V_A2E, V_A2O, V_A2M):
        p("v_add_u32 v%d, %d, v%d" % (b + 1, 3 * SLOT, b))
        p("v_add_u32 v%d, %d, v%d" % (b + 2, 6 * SLOT, b))
    p("s_mul_i32 s30, s%d, 28672" % S_I)
    p("s_add_u32 s30, s30, %d" % H2L)
    p("s_lshl_b32 s31, s%d, 10" % S_C)
    p("s_add_u32 s32, s30, s31")
    p("v_add_u32 v%d, s32, v%d" % (V_HE, V_L16))
    p("s_sub_u32 s32, s30, s31")
    p("v_add_u32 v%d, s32, v%d" % (V_HO, V_L16))
    p("s_lshl_b32 s30, s%d, 11" % S_W)
    p("s_add_u32 s30, s30, %d" % XB)
    p("v_add_u32 v%d, s30, v%d" % (V_XW, V_L16))
    p("v_xor_b32 v%d, 2048, v%d" % (V_XR, V_XW))
    p("s_mov_b32 s%d, 0x%08x" % (S_C2, f2u(C2)))
    p("s_mov_b32 s%d, 0x%08x" % (S_C2 + 1, f2u(C2)))
    p("v_mov_b32 v%d, 0x%08x" % (V_C1, f2u(C1)))
    p("v_mov_b32 v%d, 0x%08x" % (V_C1 + 1, f2u(C1)))
    p("s_cmp_eq_u32 s%d, 0" % S_C)
    p("s_cselect_b32 s%d, 1.0, 0" % S_MSK)
    p("s_cselect_b64 s[%d:%d], 0, -1" % (S_CM, S_CM + 1))
    p("s_lshl_b32 s33, s%d, 1" % S_TB)
    p("s_add_u32 s33, s33, s%d" % S_I)
    p("s_mul_i32 s30, s33, 57344")
    p("s_mul_i32 s31, s%d, 7168" % S_FB)
    p("s_add_u32 s30, s30, s31")
    p("s_add_u32 s30, s30, %d" % Z1)
    p("s_lshl_b32 s31, s%d, 12" % S_C)
    p("s_add_u32 s%d, s30, s31" % S_Z1)
    p("s_lshl_b32 s31, s%d, 10" % S_C)
    p("s_add_u32 s34, s30, s31")
    p("v_and_b32 v96, 19, v0")
    p("v_and_b32 v97, 4, v0")
    p("v_lshl_add_u32 v96, v97, 1, v96")
    p("v_and_b32 v97, 8, v0")
    p("v_lshrrev_b32 v97, 1, v97")
    p("v_add_u32 v96, v96, v97")
    p("v_mul_u32_u24 v96, 224, v96")
    p("v_lshrrev_b32 v97, 5, v0")
    p("v_lshl_add_u32 v%d, v97, 4, v96" % V_Z2)
    p("s_mul_i32 s31, s%d, 458752" % S_FB)
    p("s_mul_i32 s32, s33, 7168")
    p("s_add_u32 s31, s31, s32")
    p("s_lshl_b32 s32, s%d, 7" % S_C)
    p("s_add_u32 s31, s31, s32")
    p("s_add_u32 s%d, s31, %d" % (S_Z2, Z2N))
    p("s_add_u32 s30, s30, %d" % (12 * 512))
    p("v_add_u32 v96, s30, v%d" % V_L16)
    p("s_add_u32 s31, s%d, 96" % S_Z2)
    p("v_add_u32 v97, s31, v%d" % V_Z2)
    p("v_cndmask_b32 v%d, v97, v96, s[%d:%d]" % (V_Z24, S_CM, S_CM + 1))
    p("s_lshl_b32 s31, s33, 12")
    p("s_add_u32 s35, s31, %d" % STATS)
    p("s_lshl_b32 s31, s%d, 1" % S_FB)
    p("s_add_u32 s31, s31, s%d" % S_C)
    p("s_lshl_b32 s31, s31, 8")
    p("s_add_u32 s%d, s35, s31" % S_STO)
    p("v_and_b32 v96, 31, v0")
    p("v_lshlrev_b32 v96, 3, v96")
    p("v_lshrrev_b32 v97, 5, v0")
    p("v_lshl_add_u32 v%d, v97, 11, v96" % V_PL)
    p("v_lshl_add_u32 v%d, v97, 31, v96" % V_ST)

    def win(a):
        w = a // (3 * SLOT); return w, a - w * 3 * SLOT
    mf = []
    for s in range(28):
        w, off = win(slot_of(s // 4))
        for tt in range(2):
            reg = (V_A1O if s & 1 else V_A1E) + w
            mf.append(dict(slab=s // 4, acc=ACC1 + 16 * tt, first=(s == 0), B=A_H + 4 * s,
                           reads=[(reg, off + (8 * ((s // 2) % 2) + 4 * q) * 1088 + 64 * tt) for q in range(2)]))
    G1 = len(mf)
    for s in range(28):
        k = 7 + s // 4
        w, off = win(slot_of(k))
        o = off + ((s // 2) % 2) * 32 * 192
        if s % 2 == 0:
            mf.append(dict(slab=k, acc=ACC5, first=(s == 0), B=A_H + 4 * s, reads=[(V_A2M + w, o + 4 * q * 192) for q in range(2)]))
        reg = (V_A2O if s & 1 else V_A2E) + w
        mf.append(dict(slab=k, acc=ACC2, first=(s == 0), B=A_H + 4 * s, reads=[(reg, o + 4 * q * 192) for q in range(2)]))
    N = len(mf)
    last_use = {}
    for n, m in enumerate(mf): last_use[m["slab"]] = n

    sc = Sched(p, budget)
    SC = (S_C2, V_C1)
    rdy = G1 + 2
    for blk in range(4):
        seqs = [gelu_pair(ACC1 + 8 * blk + 2 * j, TMP + 2 * j, SC) for j in range(4)]
        for t in interleave(seqs): sc.filler(t, rdy)
        su, sq = (V_SUM, V_SQ) if blk < 3 else (V_SUMB, V_SQB)
        for j in range(4):
            X = "v[%d:%d]" % (ACC1 + 8 * blk + 2 * j, ACC1 + 8 * blk + 2 * j + 1)
            if blk in (0, 3) and j == 0:
                sc.filler("v_pk_mul_f32 v[%d:%d], %s, %s" % (sq, sq + 1, X, X), rdy)
            else:
                if blk in (0, 3) and j == 1:
                    sc.filler("v_pk_add_f32 v[%d:%d], v[%d:%d], %s" % (su, su + 1, ACC1 + 8 * blk, ACC1 + 8 * blk + 1, X), rdy)
                else:
                    sc.filler("v_pk_add_f32 v[%d:%d], v[%d:%d], %s" % (su, su + 1, su, su + 1, X), rdy)
                sc.filler("v_pk_fma_f32 v[%d:%d], %s, %s, v[%d:%d]" % (sq, sq + 1, X, X, sq, sq + 1), rdy)
    for t in ["v_add_f32 v%d, v%d, v%d" % (V_SUM, V_SUM, V_SUM + 1),
              "v_add_f32 v%d, v%d, v%d" % (V_SUMB, V_SUMB, V_SUMB + 1),
              "v_add_f32 v%d, v%d, v%d" % (V_SUM + 1, V_SQ, V_SQ + 1),
              "v_add_f32 v%d, v%d, v%d" % (V_SQB, V_SQB, V_SQB + 1),
              "v_fmac_f32 v%d, s%d, v%d" % (V_SUM, S_MSK, V_SUMB),
              "v_fmac_f32 v%d, s%d, v%d" % (V_SUM + 1, S_MSK, V_SQB),
              "v_mov_b32 v%d, v%d" % (V_SQ, V_SUM),
              "v_mov_b32 v%d, v%d" % (V_SQ + 1, V_SUM + 1),
              "v_permlane32_swap_b32 v%d, v%d" % (V_SUM, V_SQ),
              "v_permlane32_swap_b32 v%d, v%d" % (V_SUM + 1, V_SQ + 1),
              "v_pk_add_f32 v[%d:%d], v[%d:%d], v[%d:%d]" % (V_SUM, V_SUM + 1, V_SUM, V_SUM + 1, V_SQ, V_SQ + 1),
              "v_max_f32 v%d, 0, v%d" % (V_SUM + 1, V_SUM + 1),
              "buffer_store_dwordx2 v[%d:%d], v%d, s[8:11], s%d offen sc1" % (V_SUM, V_SUM + 1, V_ST, S_STO)]:
        sc.filler(t, rdy, tag="st")

    landed = set(); certified = set()
    dmaq = deque()
    st = dict(issued=4, nbar=0)
    def barrier(n, slab):
        p.wait_vm(("slab", slab))
        if st["nbar"] == 1: p.wait_lgkm("h2r")
        p("s_barrier")
        st["nbar"] += 1
        landed.add(slab)
        for s_, lu in last_use.items():
            if lu <= n: certified.add(s_)
        while st["issued"] < NS:
            k = st["issued"]
            if k >= 8 and (k - 8) not in certified: break
            if k < 8 and st["nbar"] < 2: break
            for pc in pieces(k): dmaq.append(pc)
            st["issued"] += 1
    def emit_reads(n, cur):
        m = mf[n]; used = 0
        if m["slab"] not in landed:
            while dmaq and dmaq[0][3][1] <= m["slab"]:
                pre, m0, ld, tag = dmaq.popleft()
                for t in pre: p(t)
                p(m0); p(ld, tag)
            barrier(cur, m["slab"]); used += 8
        fb = A_FR + 4 * (n % NB)
        return ["ds_read_b64_tr_b16 a[%d:%d], v%d offset:%d" % (fb + 2 * q, fb + 2 * q + 1, r, o) for q, (r, o) in enumerate(m["reads"])], used
    for n in range(D):
        txt, _ = emit_reads(n, -1)
        if n == 0:
            for s in range(4):
                p("ds_read_b128 a[%d:%d], v%d offset:%d" % (A_H + 4 * s, A_H + 4 * s + 3, V_HO if s & 1 else V_HE, 1024 * s), "h2r")
        for t in txt: p(t)
    for s in range(4, 28):
        p("ds_read_b128 a[%d:%d], v%d offset:%d" % (A_H + 4 * s, A_H + 4 * s + 3, V_HO if s & 1 else V_HE, 1024 * s), "h2r")
    for n in range(N):
        m = mf[n]
        fb = A_FR + 4 * (n % NB)
        acc = "v[%d:%d]" % (m["acc"], m["acc"] + 15)
        p("v_mfma_f32_32x32x16_bf16 %s, a[%d:%d], a[%d:%d], %s" % (acc, fb, fb + 3, m["B"], m["B"] + 3, "0" if m["first"] else acc))
        used = 2; txt = []
        if n + D < N:
            txt, u = emit_reads(n + D, n); used += u
        for _ in range(2 if len(dmaq) > 4 else 1):
            if dmaq:
                pc = dmaq.popleft()
                for t in pc[0]: p(t); used += 4
                p(pc[1]); used += 4
                if txt: p(txt.pop(0)); used += 4
                p(pc[2], pc[3]); used += 4
        for t in txt: p(t); used += 4
        sc.fill_gap(n, used)
    sc.flush_all()
    assert not dmaq and st["issued"] == NS
    def poll_loads():
        for n in range(8):
            p("buffer_load_dwordx2 v[%d:%d], v%d, s[8:11], s35 offen offset:%d sc1" % (PL + 2 * n, PL + 2 * n + 1, V_PL, 256 * n), "poll")
    p("ds_write_b128 v%d, v[%d:%d]" % (V_XW, ACC5 + 8, ACC5 + 11), "xw")
    p("ds_write_b128 v%d, v[%d:%d] offset:1024" % (V_XW, ACC5 + 12, ACC5 + 15), "xw")
    poll_loads()
    p.wait_lgkm("xw")
    p("s_barrier")
    p("ds_read_b128 v[%d:%d], v%d" % (ACC5 + 8, ACC5 + 11, V_XR))
    p("ds_read_b128 v[%d:%d], v%d offset:1024" % (ACC5 + 12, ACC5 + 15, V_XR))
    for blk in range(2):
        for t in interleave([gelu_pair(ACC2 + 8 * blk + 2 * j, TMP + 2 * j, SC) for j in range(4)]): p(t)
        for j in range(4):
            p("v_cvt_pk_bf16_f32 v%d, v%d, v%d" % (PK + 4 * blk + j, ACC2 + 8 * blk + 2 * j, ACC2 + 8 * blk + 2 * j + 1))
        p("buffer_store_dwordx4 v[%d:%d], v%d, s[8:11], s%d offen offset:%d" % (PK + 4 * blk, PK + 4 * blk + 3, V_L16, S_Z1, 1024 * blk))
    for j in range(4):
        p("v_pk_add_f32 v[%d:%d], v[%d:%d], v[%d:%d]" % (ACC5 + 2 * j, ACC5 + 2 * j + 1, ACC5 + 2 * j, ACC5 + 2 * j + 1, ACC5 + 8 + 2 * j, ACC5 + 9 + 2 * j))
    for t in interleave([gelu_pair(ACC5 + 2 * j, TMP + 2 * j, SC) for j in range(4)]): p(t)
    for j in range(4):
        p("v_cvt_pk_bf16_f32 v%d, v%d, v%d" % (PK + 8 + j, ACC5 + 2 * j, ACC5 + 2 * j + 1))
    p("buffer_store_dwordx4 v[%d:%d], v%d, s[8:11], s34 offen offset:2048" % (PK + 8, PK + 11, V_L16))
    p("s_movk_i32 s%d, 0x4000" % S_CNT)
    def check():
        p("v_max3_u32 v%d, v%d, v%d, v%d" % (TMP, PL + 1, PL + 3, PL + 5))
        p("v_max3_u32 v%d, v%d, v%d, v%d" % (TMP + 1, PL + 7, PL + 9, PL + 11))
        p("v_max3_u32 v%d, v%d, v%d, v%d" % (TMP, TMP, PL + 13, PL + 15))
        p("v_max_u32 v%d, v%d, v%d" % (TMP, TMP, TMP + 1))
        p("v_cmp_eq_u32 vcc, -1, v%d" % TMP)
    check()
    p("s_cbranch_vccz K2B_GOT", "nowait")
    p("K2B_POLL:", "nowait")
    poll_loads()
    p("s_waitcnt vmcnt(0)")
    check()
    p("s_sub_u32 s%d, s%d, 1" % (S_CNT, S_CNT))
    p("s_cbranch_scc1 K2B_GOT", "nowait")
    p("s_cbranch_vccnz K2B_POLL", "nowait")
    p("K2B_GOT:", "nowait")
    for n in range(1, 8):
        p("v_pk_add_f32 v[%d:%d], v[%d:%d], v[%d:%d]" % (PL, PL + 1, PL, PL + 1, PL + 2 * n, PL + 2 * n + 1))
    p("v_mov_b32 v%d, v%d" % (PL + 2, PL))
    p("v_mov_b32 v%d, v%d" % (PL + 3, PL + 1))
    p("v_permlane32_swap_b32 v%d, v%d" % (PL, PL + 2))
    p("v_permlane32_swap_b32 v%d, v%d" % (PL + 1, PL + 3))
    p("v_pk_add_f32 v[%d:%d], v[%d:%d], v[%d:%d]" % (PL, PL + 1, PL, PL + 1, PL + 2, PL + 3))
    p("v_mul_f32 v%d, 0x%08x, v%d" % (PL, f2u(1.0 / 896), PL))
    p("v_mov_b32 v%d, 0x%08x" % (V_SC, f2u(1e-5)))
    p("v_fmac_f32 v%d, 0x%08x, v%d" % (V_SC, f2u(1.0 / 896), PL + 1))
    p("v_fma_f32 v%d, -v%d, v%d, v%d" % (V_SC, PL, PL, V_SC))
    p("v_max_f32 v%d, 0x%08x, v%d" % (V_SC, f2u(1e-5), V_SC))
    p("v_rsq_f32 v%d, v%d" % (V_SC, V_SC))
    p("v_mul_f32 v%d, v%d, -v%d" % (V_BI, V_SC, PL))
    p("v_cndmask_b32 v%d, v%d, 1.0, s[%d:%d]" % (V_SC4, V_SC, S_CM, S_CM + 1))
    p("v_cndmask_b32 v%d, v%d, 0, s[%d:%d]" % (V_BI4, V_BI, S_CM, S_CM + 1))
    for blk in range(4):
        a, b = (V_SC, V_BI) if blk < 3 else (V_SC4, V_BI4)
        for j in range(4):
            X = "v[%d:%d]" % (ACC1 + 8 * blk + 2 * j, ACC1 + 8 * blk + 2 * j + 1)
            p("v_pk_fma_f32 %s, %s, v[%d:%d], v[%d:%d] op_sel_hi:[1,0,0]" % (X, X, a, a + 1, b, b + 1))
        for j in range(4):
            p("v_cvt_pk_bf16_f32 v%d, v%d, v%d" % (64 + 4 * blk + j, ACC1 + 8 * blk + 2 * j, ACC1 + 8 * blk + 2 * j + 1))
        if blk < 3:
            p("buffer_store_dwordx4 v[%d:%d], v%d, s[8:11], s%d offen offset:%d" % (64 + 4 * blk, 67 + 4 * blk, V_Z2, S_Z2, 32 * blk))
        else:
            p("buffer_store_dwordx4 v[%d:%d], v%d, s[8:11], 0 offen" % (64 + 4 * blk, 67 + 4 * blk, V_Z24))
    p("K2B_END:", "nowait")
    p("s_endpgm")
    return p
```

```python
from fw import *
from layout import *

WREG = 40960
STG = 11264
LDS_K3 = 4 * WREG

def gen_k3(rot=0, nslot=3):
    p = Prog()
    V_L16, V_L16B, V_WS, V_A, V_B, V_XW, V_XR, V_Z, V_Z8, V_BS = 1, 2, 3, 7, 8, 12, 13, 16, 17, 18
    ACC, RED, Z1R, BSP = 32, 144, 228, 242
    AS = [0, 28]; BS = [56, 72]
    S_W, S_FB, S_TB = 3, 4, 5
    S_OZ, S_OW, S_LB, S_U, S_CNT, S_BZ, S_BW = 20, 21, 22, 23, 24, 25, 26
    p("s_cmp_ge_u32 s2, 256")
    p("s_cbranch_scc1 K3_END")
    p("s_load_dwordx2 s[40:41], s[0:1], %d" % A_WS)
    p("s_load_dwordx4 s[44:47], s[0:1], %d" % A_WSP)
    p("v_lshrrev_b32 v20, 6, v0")
    p("v_and_b32 v0, 63, v0")
    p("v_readfirstlane_b32 s%d, v20" % S_W)
    p("s_bfe_u32 s30, s2, 0x20001")
    p("s_lshl_b32 s30, s30, 3")
    p("s_bfe_u32 s31, s2, 0x30003")
    p("s_add_u32 s%d, s30, s31" % S_TB)
    p("s_and_b32 s30, s2, 1")
    p("s_lshl_b32 s30, s30, 2")
    p("s_lshr_b32 s31, s2, 6")
    p("s_add_u32 s%d, s30, s31" % S_FB)
    p("v_lshlrev_b32 v%d, 4, v0" % V_L16)
    p("v_add_u32 v%d, 4096, v%d" % (V_L16B, V_L16))
    p("v_lshrrev_b32 v20, 2, v0")
    p("v_lshlrev_b32 v20, 12, v20")
    p("v_lshrrev_b32 v21, 5, v0")
    p("v_lshlrev_b32 v21, 1, v21")
    p("v_and_b32 v22, 3, v0")
    p("v_xor_b32 v21, v21, v22")
    p("v_lshl_add_u32 v%d, v21, 4, v20" % V_WS)
    for e in range(1, 4): p("v_add_u32 v%d, %d, v%d" % (V_WS + e, e * (65536 - 1024), V_WS))
    p("s_mul_i32 s%d, s%d, %d" % (S_LB, S_W, WREG))
    p("s_mul_i32 s%d, s%d, 458752" % (S_BZ, S_FB))
    p("s_mul_i32 s30, s%d, %d" % (S_W, 512 * 224))
    p("s_add_u32 s%d, s%d, s30" % (S_BZ, S_BZ))
    p("s_add_u32 s%d, s%d, %d" % (S_BZ, S_BZ, Z2N))
    p("s_lshl_b32 s%d, s%d, 18" % (S_BW, S_TB))
    p("s_lshl_b32 s30, s%d, 10" % S_W)
    p("s_add_u32 s%d, s%d, s30" % (S_BW, S_BW))
    if rot:
        p("s_lshr_b32 s%d, s2, 3" % S_CNT)
        p("s_mul_i32 s%d, s%d, %d" % (S_CNT, S_CNT, rot))
        p("s_lshr_b32 s%d, s%d, 1" % (S_CNT, S_CNT))
        p("s_and_b32 s%d, s%d, 15" % (S_CNT, S_CNT))
    else:
        p("s_mov_b32 s%d, s%d" % (S_OZ, S_BZ))
        p("s_mov_b32 s%d, s%d" % (S_OW, S_BW))
    srd(p, 8, 40, WS_END)
    srd(p, 12, 44, 2048 * 4096)
    srd(p, 16, 46, 4096)
    def dma(n):
        so = (n % nslot) * STG
        L = []
        if rot:
            if n: L += ["s_add_u32 s%d, s%d, 1" % (S_CNT, S_CNT), "s_and_b32 s%d, s%d, 15" % (S_CNT, S_CNT)]
            L += ["s_mul_i32 s%d, s%d, 7168" % (S_OZ, S_CNT), "s_add_u32 s%d, s%d, s%d" % (S_OZ, S_OZ, S_BZ),
                  "s_lshl_b32 s%d, s%d, 6" % (S_OW, S_CNT), "s_add_u32 s%d, s%d, s%d" % (S_OW, S_OW, S_BW)]
        elif n:
            L += ["s_add_u32 s%d, s%d, 64" % (S_OW, S_OW), "s_add_u32 s%d, s%d, 7168" % (S_OZ, S_OZ)]
        L.append("s_add_u32 m0, s%d, %d" % (S_LB, so))
        for e in range(4):
            L.append("buffer_load_dwordx4 v%d, s[12:15], s%d offen offset:%d lds" % (V_WS + e, S_OW, 1024 * e))
        L.append("s_add_u32 m0, s%d, %d" % (S_LB, so + 4096))
        for e in range(4):
            L.append("buffer_load_dwordx4 v%d, s[8:11], s%d offen offset:%d lds" % (V_L16, S_OZ, 1024 * e))
        L.append("s_add_u32 m0, s%d, %d" % (S_LB, so + 8192))
        for e in range(3):
            L.append("buffer_load_dwordx4 v%d, s[8:11], s%d offen offset:%d lds" % (V_L16B, S_OZ, 1024 * e))
        return L
    for n in range(nslot):
        for t in dma(n): p(t, ("stg", n))
    p("v_lshrrev_b32 v20, 5, v0")
    p("v_bfe_u32 v21, v0, 4, 1")
    p("v_bfe_u32 v22, v0, 2, 2")
    p("v_lshl_add_u32 v22, v21, 2, v22")
    p("v_lshl_add_u32 v22, v20, 4, v22")
    p("v_mul_u32_u24 v22, 224, v22")
    p("v_and_b32 v23, 3, v0")
    p("v_lshl_add_u32 v22, v23, 3, v22")
    p("v_add_u32 v%d, s%d, v22" % (V_A, S_LB))
    p("v_and_b32 v20, 15, v0")
    p("v_lshrrev_b32 v21, 4, v0")
    p("v_bfe_u32 v22, v0, 3, 1")
    p("v_lshlrev_b32 v22, 1, v22")
    p("v_xor_b32 v22, v22, v21")
    p("v_lshlrev_b32 v22, 4, v22")
    p("v_lshl_add_u32 v22, v20, 6, v22")
    p("v_add_u32 v22, s%d, v22" % S_LB)
    for r in range(4):
        p("s_xor_b32 s30, s%d, %d" % (S_W, r))
        p("s_lshl_b32 s30, s30, 10")
        p("v_add_u32 v%d, s30, v22" % (V_B + r))
    p("v_add_u32 v%d, s%d, v%d" % (V_XW, S_LB, V_L16))
    for r in range(1, 4):
        p("s_xor_b32 s30, s%d, %d" % (S_W, r))
        p("s_mul_i32 s30, s30, %d" % WREG)
        p("v_add_u32 v%d, s30, v%d" % (V_XR + r - 1, V_L16))
    p("s_and_b32 s30, s%d, 1" % S_W)
    p("s_lshl_b32 s30, s30, 8")
    p("v_lshlrev_b32 v23, 4, v20")
    p("v_add_u32 v23, s30, v23")
    p("v_lshl_add_u32 v%d, v21, 9, v23" % V_Z)
    p("v_lshrrev_b32 v24, 5, v0")
    p("v_lshl_add_u32 v23, v24, 9, v23")
    p("v_bfe_u32 v24, v0, 4, 1")
    p("v_lshl_add_u32 v%d, v24, 3, v23" % V_Z8)
    p("v_add_u32 v%d, %d, v%d" % (V_Z8, 6144, V_Z8))
    p("v_add_u32 v19, 4096, v%d" % V_Z)
    p("s_lshl_b32 s30, s%d, 1" % S_TB)
    p("s_lshr_b32 s31, s%d, 1" % S_W)
    p("s_add_u32 s30, s30, s31")
    p("s_mul_i32 s30, s30, 57344")
    p("s_mul_i32 s31, s%d, 7168" % S_FB)
    p("s_add_u32 s30, s30, s31")
    p("s_add_u32 s%d, s30, %d" % (S_U, U))
    p("s_add_u32 s30, s30, %d" % Z1)
    p("s_lshl_b32 s31, s%d, 7" % S_TB)
    p("s_lshl_b32 s32, s%d, 5" % S_W)
    p("s_add_u32 s31, s31, s32")
    p("v_lshlrev_b32 v%d, 1, v20" % V_BS)
    def epi_loads():
        return ["buffer_load_dwordx4 v[%d:%d], v%d, s[8:11], s30 offen" % (Z1R, Z1R + 3, V_Z),
                "buffer_load_dwordx4 v[%d:%d], v%d, s[8:11], s30 offen offset:2048" % (Z1R + 4, Z1R + 7, V_Z),
                "buffer_load_dwordx4 v[%d:%d], v19, s[8:11], s30 offen" % (Z1R + 8, Z1R + 11),
                "buffer_load_dwordx2 v[%d:%d], v%d, s[8:11], s30 offen" % (Z1R + 12, Z1R + 13, V_Z8),
                "buffer_load_ushort v%d, v%d, s[16:19], s31 offen" % (BSP, V_BS)]
    def reads(n):
        so = (n % nslot) * STG
        a, b = AS[n % 2], BS[n % 2]
        L = []
        for j in range(7):
            if j < 4: L.append("ds_read_b128 a[%d:%d], v%d offset:%d" % (b + 4 * j, b + 4 * j + 3, V_B + j, so))
            for q in range(2):
                L.append("ds_read_b64_tr_b16 a[%d:%d], v%d offset:%d" % (a + 4 * j + 2 * q, a + 4 * j + 2 * q + 1, V_A, so + 4096 + 8 * q * 224 + 32 * j))
        return L
    NSTG = 16
    p.wait_vm(("stg", 0))
    for t in reads(0): p(t, "rd")
    p.wait_lgkm("rd")
    for t in dma(nslot): p(t, ("stg", nslot))
    for n in range(NSTG):
        if n in (0, 4, 8, 15): p.stamp((0, 4, 8, 15).index(n))
        a, b = AS[n % 2], BS[n % 2]
        last = n == NSTG - 1
        order = [(j, r) for j in range(7) for r in range(4)] if not last else [(j, r) for r in (1, 2, 3, 0) for j in range(7)]
        rd = []; dm = []
        if not last:
            p.wait_vm(("stg", n + 1))
            rd = reads(n + 1)
            if n + 1 + nslot < NSTG: dm = [(t, ("stg", n + 1 + nslot)) for t in dma(n + 1 + nslot)]
            elif n + 1 + nslot == NSTG: dm = [(t, "epi") for t in epi_loads()]
        wr = []
        for k, (j, r) in enumerate(order):
            d = ACC + (7 * r + j) * 4
            acc = "v[%d:%d]" % (d, d + 3)
            p("v_mfma_f32_16x16x32_bf16 %s, a[%d:%d], a[%d:%d], %s" % (acc, a + 4 * j, a + 4 * j + 3, b + 4 * r, b + 4 * r + 3, "0" if n == 0 else acc))
            if rd:
                for _ in range(2):
                    if rd: p(rd.pop(0), "rd")
            elif k >= 14 and dm:
                if k == 14: p.wait_lgkm("rd")
                for _ in range(2):
                    if dm:
                        t, tag = dm.pop(0); p(t, tag)
            if last and k >= 5 and k - 5 < 21:
                jj, rr = order[k - 5]
                dd = ACC + (7 * rr + jj) * 4
                p("ds_write_b128 v%d, v[%d:%d] offset:%d" % (V_XW, dd, dd + 3, (7 * (rr - 1) + jj) * 1024), "xw")
        for (t, tag) in dm: p(t, tag)
    p.stamp(4)
    p.wait_lgkm("xw")
    p("s_barrier")
    for j in range(7):
        for r in range(1, 4):
            d = RED + (3 * j + r - 1) * 4
            p("ds_read_b128 v[%d:%d], v%d offset:%d" % (d, d + 3, V_XR + r - 1, (7 * (r - 1) + j) * 1024))
    p("v_lshlrev_b32 v%d, 16, v%d" % (BSP, BSP))
    T = 60
    for j in range(7):
        d = ACC + 4 * j
        for h in range(2):
            X = "v[%d:%d]" % (d + 2 * h, d + 2 * h + 1)
            p("v_pk_add_f32 %s, %s, v[%d:%d] op_sel_hi:[1,0]" % (X, X, BSP, BSP + 1))
        z = Z1R + (4 * (j // 2) + 2 * (j % 2))
        for h in range(2):
            p("v_lshlrev_b32 v%d, 16, v%d" % (T + 4 * j + 2 * h, z + h))
            p("v_and_b32 v%d, 0xffff0000, v%d" % (T + 4 * j + 2 * h + 1, z + h))
    for j in range(7):
        d = ACC + 4 * j
        r0 = RED + 12 * j
        for h in range(2):
            p("v_pk_add_f32 v[%d:%d], v[%d:%d], v[%d:%d]" % (r0 + 2 * h, r0 + 2 * h + 1, r0 + 2 * h, r0 + 2 * h + 1, r0 + 4 + 2 * h, r0 + 5 + 2 * h))
            p("v_pk_add_f32 v[%d:%d], v[%d:%d], v[%d:%d]" % (d + 2 * h, d + 2 * h + 1, d + 2 * h, d + 2 * h + 1, r0 + 8 + 2 * h, r0 + 9 + 2 * h))
        for h in range(2):
            p("v_pk_add_f32 v[%d:%d], v[%d:%d], v[%d:%d]" % (d + 2 * h, d + 2 * h + 1, d + 2 * h, d + 2 * h + 1, r0 + 2 * h, r0 + 2 * h + 1))
        for h in range(2):
            p("v_pk_mul_f32 v[%d:%d], v[%d:%d], v[%d:%d]" % (d + 2 * h, d + 2 * h + 1, d + 2 * h, d + 2 * h + 1, T + 4 * j + 2 * h, T + 4 * j + 2 * h + 1))
        o = 100 + 2 * j
        for h in range(2):
            p("v_cvt_pk_bf16_f32 v%d, v%d, v%d" % (o + h, d + 2 * h, d + 2 * h + 1))
        if j == 1: p("buffer_store_dwordx4 v[100:103], v%d, s[8:11], s%d offen" % (V_Z, S_U))
        if j == 3: p("buffer_store_dwordx4 v[104:107], v%d, s[8:11], s%d offen offset:2048" % (V_Z, S_U))
        if j == 5: p("buffer_store_dwordx4 v[108:111], v19, s[8:11], s%d offen" % S_U)
        if j == 6: p("buffer_store_dwordx2 v[112:113], v%d, s[8:11], s%d offen" % (V_Z8, S_U))
    p("K3_END:", "nowait")
    p("s_endpgm")
    return p
```

```python
from fw import *
from layout import *

WREG = 28672
LDS_K4 = 4 * WREG

def gen_k4():
    p = Prog()
    V_L16, V_P1, V_P2, V_A, V_XW, V_XR, V_GB, V_O = 1, 2, 3, 4, 6, 7, 10, 11
    ACC, RED, X2R, GB = 32, 96, 144, 152
    A_B, A_FR, NB = 0, 112, 8
    S_W, S_TB, S_DB, S_U0, S_U1, S_WO, S_LB = 3, 4, 5, 20, 21, 22, 23
    p("s_cmp_ge_u32 s2, 224")
    p("s_cbranch_scc1 K4_END")
    p("s_load_dwordx2 s[40:41], s[0:1], %d" % A_WS)
    p("s_load_dwordx2 s[42:43], s[0:1], %d" % A_WOUT)
    p("s_load_dwordx2 s[44:45], s[0:1], %d" % A_OUT)
    p("v_lshrrev_b32 v20, 6, v0")
    p("v_and_b32 v0, 63, v0")
    p("v_readfirstlane_b32 s%d, v20" % S_W)
    p("s_and_b32 s30, s2, 7")
    p("s_lshl_b32 s30, s30, 2")
    p("s_bfe_u32 s31, s2, 0x20003")
    p("s_add_u32 s%d, s30, s31" % S_TB)
    p("s_lshr_b32 s%d, s2, 5" % S_DB)
    p("v_lshlrev_b32 v%d, 4, v0" % V_L16)
    p("v_lshrrev_b32 v20, 3, v0")
    p("v_and_b32 v21, 7, v0")
    p("v_bfe_u32 v22, v0, 4, 1")
    p("v_lshlrev_b32 v22, 2, v22")
    p("v_xor_b32 v21, v21, v22")
    p("v_lshlrev_b32 v21, 4, v21")
    p("v_mul_u32_u24 v22, 896, v20")
    p("v_add_u32 v%d, v22, v21" % V_P2)
    p("v_lshrrev_b32 v22, 5, v0")
    p("v_mul_u32_u24 v22, %d, v22" % (12 * 896))
    p("v_add_u32 v%d, v22, v%d" % (V_P1, V_P2))
    p("s_lshr_b32 s30, s%d, 1" % S_W)
    p("s_lshl_b32 s31, s%d, 1" % S_TB)
    p("s_add_u32 s33, s31, s30")
    p("s_xor_b32 s32, s33, 1")
    p("s_mul_i32 s34, s%d, 14336" % S_W)
    p("s_add_u32 s34, s34, %d" % U)
    p("s_mul_i32 s%d, s33, 57344" % S_U0)
    p("s_add_u32 s%d, s%d, s34" % (S_U0, S_U0))
    p("s_mul_i32 s%d, s32, 57344" % S_U1)
    p("s_add_u32 s%d, s%d, s34" % (S_U1, S_U1))
    p("s_mul_i32 s%d, s%d, %d" % (S_WO, S_W, 224 * 896))
    p("s_lshl_b32 s31, s%d, 7" % S_DB)
    p("s_add_u32 s%d, s%d, s31" % (S_WO, S_WO))
    p("s_mul_i32 s%d, s%d, %d" % (S_LB, S_W, WREG))
    srd(p, 8, 40, WS_END)
    srd(p, 12, 42, 896 * 896)
    srd(p, 16, 44, 2048 * 896)
    for ks in range(14):
        for e in range(2):
            pi = 2 * ks + e
            ch = pi % 14
            base = 112 * (pi // 14) + (32 * (ch // 4) + 4 * (ch % 4) if ch < 12 else 96 + 8 * (ch - 12))
            p("s_add_u32 s35, s%d, %d" % (S_WO, base * 896))
            p("s_add_u32 m0, s%d, %d" % (S_LB, 1024 * pi))
            p("buffer_load_dwordx4 v%d, s[12:15], s35 offen lds" % (V_P1 if ch < 12 else V_P2), ("ks", ks))
        if ks and ks % 4 == 0:
            p("s_add_u32 s%d, s%d, 4096" % (S_U0, S_U0))
            p("s_add_u32 s%d, s%d, 4096" % (S_U1, S_U1))
        for i in range(2):
            b = A_B + 8 * ks + 4 * i
            p("buffer_load_dwordx4 a[%d:%d], v%d, s[8:11], s%d offen offset:%d" % (b, b + 3, V_L16, S_U0 + i, (ks % 4) * 1024))
    p("v_bfe_u32 v20, v0, 2, 2")
    p("v_lshlrev_b32 v20, 7, v20")
    p("v_lshrrev_b32 v21, 5, v0")
    p("v_lshl_add_u32 v20, v21, 10, v20")
    p("v_bfe_u32 v21, v0, 4, 1")
    p("v_lshl_add_u32 v20, v21, 5, v20")
    p("v_and_b32 v21, 1, v0")
    p("v_lshl_add_u32 v20, v21, 4, v20")
    p("v_bfe_u32 v21, v0, 1, 1")
    p("v_lshl_add_u32 v20, v21, 3, v20")
    p("v_bfe_u32 v21, v0, 3, 1")
    p("s_and_b32 s36, s%d, 1" % S_W)
    p("v_xor_b32 v21, s36, v21")
    p("v_lshl_add_u32 v20, v21, 6, v20")
    p("v_add_u32 v%d, s%d, v20" % (V_A, S_LB))
    p("v_xor_b32 v%d, 64, v%d" % (V_A + 1, V_A))
    p("v_add_u32 v%d, s%d, v%d" % (V_XW, S_LB, V_L16))
    for r in range(1, 4):
        p("s_xor_b32 s30, s%d, %d" % (S_W, r))
        p("s_mul_i32 s30, s30, %d" % WREG)
        p("v_add_u32 v%d, s30, v%d" % (V_XR + r - 1, V_L16))
    p("v_lshrrev_b32 v21, 5, v0")
    p("v_lshlrev_b32 v%d, 5, v21" % V_GB)
    p("v_and_b32 v20, 31, v0")
    p("v_mul_u32_u24 v20, 896, v20")
    p("v_lshl_add_u32 v%d, v21, 4, v20" % V_O)
    p("s_lshl_b32 s37, s%d, 1" % S_DB)
    p("s_add_u32 s37, s37, s36")
    p("s_mul_i32 s38, s33, 28672")
    p("s_lshl_b32 s30, s37, 11")
    p("s_add_u32 s30, s30, s38")
    p("s_add_u32 s30, s30, %d" % X2)
    p("s_lshl_b32 s31, s37, 7")
    p("s_add_u32 s31, s31, %d" % (MOD + 5 * 1792))
    p("s_lshl_b32 s39, s37, 6")
    p("s_add_u32 s39, s39, s38")
    epi = ["buffer_load_dwordx4 v[%d:%d], v%d, s[8:11], s30 offen offset:%d" % (X2R + 4 * e, X2R + 4 * e + 3, V_L16, 1024 * e) for e in range(2)]
    epi += ["buffer_load_dwordx4 v[%d:%d], v%d, s[8:11], s31 offen offset:%d" % (GB + 4 * e, GB + 4 * e + 3, V_GB, 64 * (e // 2) + 16 * (e % 2)) for e in range(4)]
    def reads(ks):
        L = []
        for dt in range(2):
            fb = A_FR + 4 * ((2 * ks + dt) % NB)
            for q in range(2):
                L.append("ds_read_b64_tr_b16 a[%d:%d], v%d offset:%d" % (fb + 2 * q, fb + 2 * q + 1, V_A + dt, 2048 * ks + 512 * q))
        return L
    p.wait_vm(("ks", 0))
    for t in reads(0): p(t)
    for ks in range(14):
        rd = []
        if ks + 1 < 14:
            p.wait_vm(("ks", ks + 1))
            rd = reads(ks + 1)
        order = (1, 2, 3, 0) if ks == 13 else (0, 2, 1, 3)
        for r in order:
            fb = A_FR + 4 * ((2 * ks + (r & 1)) % NB)
            b = A_B + 8 * ks + 4 * (r >> 1)
            acc = "v[%d:%d]" % (ACC + 16 * r, ACC + 16 * r + 15)
            p("v_mfma_f32_32x32x16_bf16 %s, a[%d:%d], a[%d:%d], %s" % (acc, fb, fb + 3, b, b + 3, "0" if ks == 0 else acc))
            if rd: p(rd.pop(0))
            if ks >= 2 and epi: p(epi.pop(0))
    for r in range(1, 4):
        for e in range(4):
            p("ds_write_b128 v%d, v[%d:%d] offset:%d" % (V_XW, ACC + 16 * r + 4 * e, ACC + 16 * r + 4 * e + 3, (4 * (r - 1) + e) * 1024), "xw")
    p.wait_lgkm("xw")
    p("s_barrier")
    for e in range(4):
        for r in range(1, 4):
            d = RED + 16 * (r - 1) + 4 * e
            p("ds_read_b128 v[%d:%d], v%d offset:%d" % (d, d + 3, V_XR + r - 1, (4 * (r - 1) + e) * 1024))
    T = 48
    for d in range(8):
        p("v_lshlrev_b32 v%d, 16, v%d" % (T + 2 * d, X2R + d))
        p("v_and_b32 v%d, 0xffff0000, v%d" % (T + 2 * d + 1, X2R + d))
    pr = lambda b: "v[%d:%d]" % (b, b + 1)
    for e in range(2):
        for d in range(4 * e, 4 * e + 4):
            p("v_pk_add_f32 %s, %s, %s" % (pr(ACC + 2 * d), pr(ACC + 2 * d), pr(RED + 2 * d)))
            p("v_pk_add_f32 %s, %s, %s" % (pr(RED + 16 + 2 * d), pr(RED + 16 + 2 * d), pr(RED + 32 + 2 * d)))
        for d in range(4 * e, 4 * e + 4):
            p("v_pk_add_f32 %s, %s, %s" % (pr(ACC + 2 * d), pr(ACC + 2 * d), pr(RED + 16 + 2 * d)))
        for d in range(4 * e, 4 * e + 4):
            p("v_pk_fma_f32 %s, %s, %s, %s" % (pr(ACC + 2 * d), pr(ACC + 2 * d), pr(GB + 2 * d), pr(T + 2 * d)))
        for d in range(4 * e, 4 * e + 4):
            p("v_cvt_pk_bf16_f32 v%d, v%d, v%d" % (64 + d, ACC + 2 * d, ACC + 2 * d + 1))
        p("buffer_store_dwordx4 v[%d:%d], v%d, s[16:19], s39 offen offset:%d" % (64 + 4 * e, 67 + 4 * e, V_O, 32 * e))
    p("K4_END:", "nowait")
    p("s_endpgm")
    return p
```

```python
MOD   = 0x0
FLAGS = 0x4000
STATS = 0x2000000
XN    = 0x40000
X2    = 0x200000
H2    = 0x400000
Z1    = 0x600000
Z2N   = 0xA00000
U     = 0xE00000
PART  = 0x1200000
TS    = 0x2040000
WS_END = 0x2100000
A_X, A_K, A_V, A_WQ, A_WO, A_BX, A_WIN, A_WSP, A_BSP, A_WOUT, A_C, A_WMOD, A_OUT, A_DBG, A_WS = [8 * i for i in range(15)]
```

```python
from fw import *
from collections import deque

class Sched:
    def __init__(self, p, budget=24):
        self.p = p
        self.fill = deque()
        self.dma = deque()
        self.budget = budget
    def filler(self, text, ready=-1, deadline=10**9, tag=None):
        self.fill.append((Ins(text, tag), ready, deadline))
    def flush_deadline(self, n):
        last = -1
        for k, (i, r, d) in enumerate(self.fill):
            if d <= n: last = k
        for _ in range(last + 1):
            i, r, d = self.fill.popleft()
            self.p.add(i)
    def fill_gap(self, n, used):
        while self.fill:
            i, r, d = self.fill[0]
            if r > n or used + i.cost > self.budget: break
            self.fill.popleft(); self.p.add(i); used += i.cost
        return used
    def flush_all(self):
        while self.fill:
            i, r, d = self.fill.popleft(); self.p.add(i)
```

```python
import sys, os
sys.path.insert(0, os.path.dirname(os.path.abspath(__file__)))
from fw import *
from k0 import *
from k1 import *
NAME = "adaLN_cond__sliding_block_cached__mixer_gmlp__prompt"

def header():
    ref = open("cdna_kernels/%s.s.ref" % NAME).read().split("\n") if os.path.exists("cdna_kernels/%s.s.ref" % NAME) else []
    out = []
    for l in ref:
        if l.startswith("; Override") : break
        out.append(l)
    return "\n".join(out)

def build(path, upto=99, opts=None):
    opts = opts or {}
    m = Module()
    if opts.get('ts'): m.ts = TS
    p, g = gen_k0(**opts.get('k0', {}))
    m.kernel("k0_kernel", p, vgpr=96)
    m.launch("k0_kernel", g, 256, 2048)
    if upto >= 1:
        p = gen_k1(**opts.get("k1", {}))
        ins, nn = m.kernel("k1_kernel", p, vgpr=256, agpr=256, lookahead=1)
        m.launch("k1_kernel", 256, 256, LDS_BYTES)
    if upto >= 2:
        import k2
        k2.add(m, opts, upto)
    open(path, "w").write(m.text(header()))
    return m

if __name__ == "__main__":
    build(sys.argv[1], int(sys.argv[2]) if len(sys.argv) > 2 else 99)
```

```python
import re

REG_RE = re.compile(r'^(-|abs\()?([vas])(\d+)\)?$')
RNG_RE = re.compile(r'^(-|abs\()?([vas])\[(\d+):(\d+)\]\)?$')

def regs_of(tok):
    tok = tok.strip()
    m = REG_RE.match(tok)
    if m: return [(m.group(2), int(m.group(3)))]
    m = RNG_RE.match(tok)
    if m: return [(m.group(2), i) for i in range(int(m.group(3)), int(m.group(4)) + 1)]
    if tok in ("vcc",): return [("vcc", 0)]
    if tok in ("exec",): return [("exec", 0)]
    if tok == "m0": return [("m0", 0)]
    return []

TRANS = ("v_exp_f32", "v_log_f32", "v_rcp_f32", "v_rsq_f32", "v_sqrt_f32", "v_sin_f32", "v_cos_f32")

class Ins:
    __slots__ = ("text", "op", "kind", "dst", "src", "tag", "cost", "srcC", "wide")
    def __init__(self, text, tag=None):
        self.text = text.strip()
        self.tag = tag
        self.srcC = []
        self.wide = False
        t = self.text
        if t.endswith(":"):
            self.op = "label"; self.kind = "label"; self.dst = []; self.src = []; self.cost = 0; return
        if t.startswith(".") or t.startswith(";"):
            self.op = "dir"; self.kind = "dir"; self.dst = []; self.src = []; self.cost = 0; return
        parts = t.split(None, 1)
        op = parts[0]; self.op = op
        rest = parts[1] if len(parts) > 1 else ""
        bm = re.findall(r'\s(?:op_sel|op_sel_hi|neg_lo|neg_hi|quad_perm):\[[^\]]*\]', rest)
        rest = re.sub(r'\s(?:op_sel|op_sel_hi|neg_lo|neg_hi|quad_perm):\[[^\]]*\]', '', rest)
        ops = [o.strip() for o in rest.split(",")] if rest else []
        mods = ""
        if ops:
            last = ops[-1].split(None, 1)
            ops[-1] = last[0]
            mods = last[1] if len(last) > 1 else ""
        mods += " ".join(bm)
        R = [regs_of(o) for o in ops]
        flat = lambda L: [r for x in L for r in x]
        self.cost = 4
        if op.startswith("PSEUDO"):
            self.kind = "pseudo"; self.dst = []; self.src = []; self.cost = 0
        elif op.startswith("v_mfma"):
            self.kind = "mfma32" if "32x32" in op else "mfma16"
            self.dst = R[0]; self.src = flat(R[1:]); self.srcC = R[3]
            self.cost = 8
        elif op.startswith("ds_read") or op.startswith("ds_bpermute") or op.startswith("ds_swizzle"):
            self.kind = "dsr"; self.dst = R[0]; self.src = flat(R[1:])
        elif op.startswith("ds_write"):
            self.kind = "dsw"; self.dst = []; self.src = flat(R)
        elif op.startswith("buffer_load") or op.startswith("global_load"):
            if " lds" in (" " + mods) or "_lds_" in op:
                self.kind = "dma"; self.dst = []; self.src = flat(R) + [("m0", 0)]
            else:
                self.kind = "vload"; self.dst = R[0]; self.src = flat(R[1:])
        elif op.startswith("buffer_store") or op.startswith("global_store"):
            self.kind = "vstore"; self.dst = []; self.src = flat(R)
            self.wide = op.endswith("x4") or op.endswith("x3")
            self.srcC = R[0] if op.startswith("buffer") else R[1]
        elif op.startswith("buffer_atomic") or op.startswith("global_atomic"):
            if "sc0" in mods:
                self.kind = "vload"; self.dst = R[0]; self.src = flat(R)
            else:
                self.kind = "vstore"; self.dst = []; self.src = flat(R)
        elif op.startswith("buffer_wbl2") or op.startswith("buffer_inv"):
            self.kind = "vstore"; self.dst = []; self.src = []
        elif op.startswith("s_load") or op.startswith("s_buffer_load") or op.startswith("s_memtime") or op.startswith("s_memrealtime"):
            self.kind = "smem"; self.dst = R[0]; self.src = flat(R[1:])
        elif op == "s_waitcnt":
            self.kind = "wait"; self.dst = []; self.src = []
        elif op == "s_barrier":
            self.kind = "barrier"; self.dst = []; self.src = []
        elif op == "s_nop":
            self.kind = "nop"; self.dst = []; self.src = []
        elif op.startswith("s_cbranch") or op == "s_branch":
            self.kind = "branch"; self.dst = []; self.src = []
        elif op in ("s_endpgm", "s_sleep", "s_setprio"):
            self.kind = "misc"; self.dst = []; self.src = []
        elif op.startswith("s_cmp"):
            self.kind = "salu"; self.dst = []; self.src = flat(R)
        elif op.startswith("s_"):
            self.kind = "salu"; self.dst = R[0]; self.src = flat(R[1:])
            if "saveexec" in op: self.dst = self.dst + [("exec", 0)]
            if op in ("s_addk_i32", "s_mulk_i32"): self.src = self.src + R[0]
        elif op.startswith("v_"):
            self.kind = "valu"
            self.dst = R[0]; self.src = flat(R[1:])
            if op.startswith("v_permlane") and "swap" in op:
                self.kind = "perm"; self.dst = R[0] + R[1]; self.src = R[0] + R[1]
            elif op.startswith("v_readfirstlane") or op.startswith("v_readlane"):
                self.kind = "rfl"
            elif op.startswith("v_fmac") or op.startswith("v_dot2c") or op.startswith("v_pk_fmac"):
                self.src = self.src + R[0]
            elif op.startswith("v_add_co") or op.startswith("v_addc_co") or op.startswith("v_sub_co"):
                self.dst = R[0] + R[1]; self.src = flat(R[2:])
            elif op.startswith("v_cmpx"):
                self.dst = R[0] + [("exec", 0)]
            if op.startswith("v_dot"): self.kind = "dot"
            base = op.replace("_e32", "").replace("_e64", "").replace("_dpp", "")
            if base in TRANS: self.kind = "trans"; self.cost = 8
            if "row_" in mods or "quad_perm" in mods or "_dpp" in op:
                self.kind = "dpp"
                if "bound_ctrl" not in mods: self.src = self.src + R[0]
        else:
            raise ValueError("unknown instr: " + t)
    def __repr__(self): return self.text

VALU_KINDS = ("valu", "trans", "perm", "rfl", "dpp", "dot")
VMEM_KINDS = ("vload", "vstore", "dma")

class Prog:
    def __init__(self):
        self.ins = []
    def __call__(self, text, tag=None):
        for ln in text.strip("\n").split("\n"):
            ln = ln.split("//")[0].strip()
            if ln: self.ins.append(Ins(ln, tag))
    def add(self, i): self.ins.append(i)
    def wait_vm(self, tag): self.ins.append(Ins("PSEUDO_WAITVM", tag))
    def wait_lgkm(self, tag): self.ins.append(Ins("PSEUDO_WAITLGKM", tag))
    def stamp(self, k): self.ins.append(Ins("PSEUDO_STAMP", k))
    def wait_all(self): self("s_waitcnt vmcnt(0) lgkmcnt(0)")

def parse_wait(text):
    vm = re.search(r'vmcnt\((\d+)\)', text); lg = re.search(r'lgkmcnt\((\d+)\)', text)
    return (int(vm.group(1)) if vm else None, int(lg.group(1)) if lg else None)

def insert_waits(ins, lookahead=0):
    out = []
    vq = []
    lq = []
    def need(q, regs):
        n = None
        for p, e in enumerate(q):
            if e[0] & regs: n = len(q) - 1 - p
        return n
    def emit(vm, lg):
        nonlocal vq, lq
        if lg is not None and any(e[2] for e in lq): lg = 0
        if vm is not None and vm >= len(vq): vm = None
        if lg is not None and lg >= len(lq): lg = None
        if vm is not None and vm > 63: vm = None if False else 63
        if lg is not None and lg > 15: lg = 15
        if vm is None and lg is None: return
        s = "s_waitcnt"
        if vm is not None: s += " vmcnt(%d)" % vm; vq = vq[len(vq) - vm:] if vm else []
        if lg is not None: s += " lgkmcnt(%d)" % lg; lq = lq[len(lq) - lg:] if lg else []
        if out and out[-1].kind == "wait" and out[-1].tag == "auto":
            pv, pl = parse_wait(out[-1].text)
            out.pop()
            vm2 = vm if pv is None else (pv if vm is None else min(pv, vm))
            lg2 = lg if pl is None else (pl if lg is None else min(pl, lg))
            s = "s_waitcnt" + ("" if vm2 is None else " vmcnt(%d)" % vm2) + ("" if lg2 is None else " lgkmcnt(%d)" % lg2)
        out.append(Ins(s, "auto"))
    n = len(ins)
    for idx, i in enumerate(ins):
        if i.kind == "pseudo":
            if i.op == "PSEUDO_WAITVM":
                k = None
                for p, e in enumerate(vq):
                    if e[1] == i.tag or (isinstance(i.tag, (set, frozenset, list, tuple)) and not isinstance(e[1], (list,set)) and e[1] in i.tag): k = len(vq) - 1 - p
                emit(k, None)
            elif i.op == "PSEUDO_WAITLGKM":
                k = None
                for p, e in enumerate(lq):
                    if e[1] == i.tag: k = len(lq) - 1 - p
                emit(None, k)
            continue
        if i.kind == "wait":
            vm, lg = parse_wait(i.text)
            if vm is not None: vq = vq[len(vq) - vm:] if (vm and vm < len(vq)) else ([] if vm == 0 else vq)
            if lg is not None: lq = lq[len(lq) - lg:] if (lg and lg < len(lq)) else ([] if lg == 0 else lq)
            out.append(i); continue
        if i.kind in ("label", "branch"):
            if i.tag != "nowait": emit(0 if vq else None, 0 if lq else None)
            out.append(i); continue
        if i.op == "s_endpgm":
            vq = []; lq = []; out.append(i); continue
        regs = set(i.src) | set(i.dst)
        vm = need(vq, regs); lg = need(lq, regs)
        if lg is not None and lookahead and i.kind in ("mfma32", "mfma16"):
            cnt = 0
            for j in range(idx + 1, min(n, idx + 40)):
                if ins[j].kind in ("mfma32", "mfma16"):
                    l2 = need(lq, set(ins[j].src))
                    if l2 is not None and l2 >= 2: lg = min(lg, l2)
                    cnt += 1
                    if cnt >= lookahead: break
        emit(vm, lg)
        out.append(i)
        if i.kind == "vload": vq.append((set(i.dst), i.tag))
        elif i.kind in ("vstore", "dma"): vq.append((set(), i.tag))
        elif i.kind == "dsr": lq.append((set(i.dst), i.tag, False))
        elif i.kind == "dsw": lq.append((set(), i.tag, False))
        elif i.kind == "smem": lq.append((set(i.dst), i.tag, True))
    return out

def states(i):
    if i.kind == "nop": return int(i.text.split()[1], 0) + 1
    if i.kind in ("label", "dir", "pseudo"): return 0
    return 1

def hazard_need(p, c):
    pd = set(p.dst); cs = set(c.src); cd = set(c.dst)
    n = 0
    pv = p.kind in VALU_KINDS
    cv = c.kind in VALU_KINDS
    cm = c.kind in ("mfma32", "mfma16")
    if pv:
        sg = {r for r in pd if r[0] in ("s", "vcc")}
        vg = {r for r in pd if r[0] in ("v", "a")}
        if sg & cs:
            if c.kind in VMEM_KINDS: n = max(n, 5)
            if cv: n = max(n, 4 if c.kind == "rfl" else 2)
        if vg & cs:
            if c.kind == "dpp" or c.kind == "perm": n = max(n, 2)
            if c.kind == "rfl": n = max(n, 1)
            if p.kind == "trans" and cv and c.kind != "trans": n = max(n, 1)
            if cm: n = max(n, 2)
        if p.kind == "dot" and (vg & (cs | cd)) and not (c.op == p.op and not (vg & set(c.src[:-1]) )): n = max(n, 3)
        if ("exec", 0) in pd:
            if c.kind == "dpp": n = max(n, 5)
            if cm or c.kind in ("rfl", "perm"): n = max(n, 4)
    if p.kind == "salu" and ("m0", 0) in pd and c.kind == "dma": n = max(n, 1)
    if p.kind == "vstore" and p.wide and (set(p.srcC) & cd): n = max(n, 2 if cv else 1)
    if p.kind in ("mfma32", "mfma16"):
        big = p.kind == "mfma32"
        if cm:
            cc = set(c.srcC); ab = set(c.src[:8])
            if pd & ab: n = max(n, 12 if big else 8)
            if pd & cc and not (list(p.dst) == list(c.srcC) and p.kind == c.kind): n = max(n, 10 if big else 6)
        elif cv:
            if pd & (cs | cd): n = max(n, 12 if big else 8)
            if set(p.srcC) & cd: n = max(n, 7 if big else 3)
        elif c.kind in VMEM_KINDS or c.kind in ("dsr", "dsw"):
            if pd & (cs | cd): n = max(n, 12 if big else 8)
    return n

def insert_nops(ins):
    out = []
    total = 0
    for c in ins:
        if c.kind in ("label", "dir", "pseudo"):
            out.append(c); continue
        need = 0
        dist = 0
        for p in reversed(out):
            if dist >= 12: break
            if c.kind == "branch" and c.tag != "nowait":
                h = 12 if p.kind == "mfma32" else 8 if p.kind == "mfma16" else 5 if (p.kind in VALU_KINDS) else 0
            else:
                h = hazard_need(p, c)
            if h - dist > need: need = h - dist
            dist += states(p)
        if need > 0:
            total += need
            while need > 0:
                k = min(need, 16)
                out.append(Ins("s_nop %d" % (k - 1), "haz"))
                need -= k
        out.append(c)
    return out, total

class Module:
    def __init__(self):
        self.kernels = []
        self.launches = []
    ts = None
    def kernel(self, name, prog, vgpr, agpr=0, sgpr=102, lookahead=0):
        if self.ts is not None:
            q = Prog()
            q("s_memrealtime s[96:97]")
            q("s_memtime s[84:85]")
            for k in range(6): q("s_mov_b32 s%d, 0" % (78 + k))
            kidx = len(self.kernels)
            for i in prog.ins:
                if i.op == "PSEUDO_STAMP" and i.tag < 0:
                    q("s_memtime s[84:85]")
                elif i.op == "PSEUDO_STAMP":
                    q("s_memtime s[86:87]"); q("s_waitcnt lgkmcnt(0)"); q("s_sub_u32 s%d, s86, s84" % (78 + i.tag))
                elif i.op == "s_endpgm":
                    q("s_waitcnt vmcnt(0) lgkmcnt(0)")
                    q("s_memrealtime s[98:99]")
                    q("s_memtime s[86:87]")
                    q("s_load_dwordx2 s[92:93], s[0:1], 112")
                    q("s_waitcnt lgkmcnt(0)")
                    q("s_mov_b32 s94, -1"); q("s_mov_b32 s95, 0x00020000")
                    q("s_mov_b64 exec, 1")
                    q("s_sub_u32 s86, s86, s84")
                    q("v_mov_b32 v4, s96"); q("v_mov_b32 v5, s98"); q("v_mov_b32 v6, s86"); q("v_mov_b32 v7, s78")
                    q("v_mov_b32 v8, s79"); q("v_mov_b32 v9, s80"); q("v_mov_b32 v10, s81"); q("v_mov_b32 v11, s82")
                    q("s_lshl_b32 s86, s2, 5")
                    q("s_add_u32 s86, s86, %d" % (self.ts + kidx * 16384))
                    q("v_mov_b32 v3, 0")
                    q("buffer_store_dwordx4 v[4:7], v3, s[92:95], s86 offen")
                    q("buffer_store_dwordx4 v[8:11], v3, s[92:95], s86 offen offset:16")
                    q.add(i)
                else: q.add(i)
            prog = q
        ins = insert_waits(prog.ins, lookahead)
        ins, nn = insert_nops(ins)
        self.kernels.append((name, ins, vgpr, agpr, sgpr))
        return ins, nn
    def launch(self, name, grid, block, lds): self.launches.append((name, grid, block, lds))
    def text(self, header=""):
        out = []
        if header: out.append(header.rstrip("\n"))
        for (n, g, b, l) in self.launches:
            out.append("; @launch kernel=%s grid=(%d,1,1) block=(%d,1,1) lds=%d" % (n, g, b, l))
        out.append('.amdgcn_target "amdgcn-amd-amdhsa--gfx950"')
        out.append(".text")
        for (n, ins, v, a, s) in self.kernels:
            out += [".globl %s" % n, ".p2align 8", ".type %s,@function" % n, "%s:" % n]
            for i in ins:
                out.append(i.text if i.kind == "label" else " " + i.text)
        out.append('.section .rodata,"a"')
        for (n, ins, v, a, s) in self.kernels:
            acc = (v + 3) // 4 * 4
            out += [".p2align 6", ".amdhsa_kernel %s" % n,
                    "  .amdhsa_next_free_vgpr %d" % (acc + a if a else v),
                    "  .amdhsa_next_free_sgpr %d" % s,
                    "  .amdhsa_accum_offset %d" % acc,
                    "  .amdhsa_group_segment_fixed_size 0",
                    "  .amdhsa_kernarg_size 120",
                    "  .amdhsa_user_sgpr_count 2",
                    "  .amdhsa_user_sgpr_kernarg_segment_ptr 1",
                    "  .amdhsa_system_sgpr_workgroup_id_x 1",
                    ".end_amdhsa_kernel"]
        return "\n".join(out) + "\n"

def srd(p, d, base, nbytes):
    p("s_mov_b32 s%d, s%d" % (d, base))
    p("s_mov_b32 s%d, s%d" % (d + 1, base + 1))
    p("s_mov_b32 s%d, 0x%x" % (d + 2, nbytes))
    p("s_mov_b32 s%d, 0x00020000" % (d + 3))

def vr(b, n=1, f="v"):
    return "%s%d" % (f, b) if n == 1 else "%s[%d:%d]" % (f, b, b + n - 1)
def ar(b, n=1): return vr(b, n, "a")
```

```python
from fw import *
from layout import *
import math

def gen_k0(pf=0):
    p = Prog()
    NMOD, NLN = 84, 64
    NPF = 107 if pf else 0
    p("s_cmp_ge_u32 s2, %d" % (NMOD + NLN + 1 + NPF))
    p("s_cbranch_scc1 K0_END")
    if pf:
        p("s_cmp_ge_u32 s2, %d" % (NMOD + NLN + 1))
        p("s_cbranch_scc1 K0_PF")
    p("s_load_dwordx2 s[4:5], s[0:1], %d" % A_WS)
    p("s_cmp_ge_u32 s2, %d" % NMOD)
    p("s_cbranch_scc1 K0_LN", "nowait")
    p("s_load_dwordx2 s[6:7], s[0:1], %d" % A_C)
    p("s_load_dwordx2 s[8:9], s[0:1], %d" % A_WMOD)
    p("v_lshrrev_b32 v1, 2, v0")
    p("v_and_b32 v2, 3, v0")
    p("v_mul_u32_u24 v3, 5376, v1")
    p("v_lshl_add_u32 v3, v2, 4, v3")
    p("v_lshlrev_b32 v4, 1, v1")
    p("s_lshl_b32 s10, s2, 6")
    srd(p, 12, 6, 896)
    srd(p, 16, 8, 448 * 5376)
    srd(p, 20, 4, WS_END)
    for m in range(7):
        p("buffer_load_ushort v%d, v4, s[12:15], 0 offen offset:%d" % (8 + m, m * 128))
    for m in range(7):
        p("buffer_load_dwordx4 v[%d:%d], v3, s[16:19], s10 offen" % (16 + 4 * m, 19 + 4 * m))
        if m < 6: p("s_add_u32 s10, s10, %d" % (64 * 5376))
    p("s_mov_b32 s11, 0xbfb8aa3b")
    for m in range(7):
        p("v_lshlrev_b32 v%d, 16, v%d" % (8 + m, 8 + m))
    for m in range(7):
        p("v_mul_f32 v%d, s11, v%d" % (48 + m, 8 + m))
    for m in range(7):
        p("v_exp_f32 v%d, v%d" % (48 + m, 48 + m))
    for m in range(7):
        p("v_add_f32 v%d, 1.0, v%d" % (48 + m, 48 + m))
    for m in range(7):
        p("v_rcp_f32 v%d, v%d" % (48 + m, 48 + m))
    for m in range(7):
        p("v_mul_f32 v%d, v%d, v%d" % (8 + m, 8 + m, 48 + m))
    for m in range(7):
        p("v_cvt_pk_bf16_f32 v%d, v%d, v%d" % (8 + m, 8 + m, 8 + m))
    for m in range(7):
        p("v_lshlrev_b32 v%d, 16, v%d" % (8 + m, 8 + m))
    for m in range(7):
        for d in range(4):
            w = 16 + 4 * m + d
            p("v_lshlrev_b32 v64, 16, v%d" % w)
            p("v_and_b32 v65, 0xffff0000, v%d" % w)
            if m == 0:
                p("v_mul_f32 v%d, v64, v8" % (56 + 2 * d))
                p("v_mul_f32 v%d, v65, v8" % (57 + 2 * d))
            else:
                p("v_fmac_f32 v%d, v64, v%d" % (56 + 2 * d, 8 + m))
                p("v_fmac_f32 v%d, v65, v%d" % (57 + 2 * d, 8 + m))
    for sh in (4, 8):
        for e in range(8):
            p("v_add_f32_dpp v%d, v%d, v%d row_ror:%d row_mask:0xf bank_mask:0xf" % (56 + e, 56 + e, 56 + e, sh))
    p("v_lshrrev_b32 v5, 4, v0")
    p("v_lshlrev_b32 v5, 7, v5")
    p("v_lshl_add_u32 v5, v2, 5, v5")
    p("v_and_b32 v6, 12, v0")
    p("v_cmp_eq_u32 vcc, 0, v6")
    p("s_and_saveexec_b64 s[24:25], vcc")
    p("ds_write_b128 v5, v[56:59]")
    p("ds_write_b128 v5, v[60:63] offset:16")
    p("s_mov_b64 exec, s[24:25]")
    p("s_waitcnt lgkmcnt(0)")
    p("s_barrier")
    p("v_cmp_gt_u32 vcc, 32, v0")
    p("s_and_saveexec_b64 s[24:25], vcc")
    p("s_cbranch_execz K0_END")
    p("v_lshlrev_b32 v5, 2, v0")
    for r in range(16):
        p("ds_read_b32 v%d, v5 offset:%d" % (16 + r, r * 128))
    for r in range(1, 16):
        p("v_add_f32 v16, v16, v%d" % (16 + r))
    p("v_cvt_pk_bf16_f32 v16, v16, v16")
    p("v_lshlrev_b32 v16, 16, v16")
    p("s_mov_b32 s26, 0")
    for lo in (14, 56):
        p("s_sub_u32 s27, s2, %d" % lo)
        p("s_cmp_lt_u32 s27, 14")
        p("s_cselect_b32 s26, 1.0, s26")
    p("v_add_f32 v16, s26, v16")
    p("v_cvt_pk_bf16_f32 v16, v16, v16")
    p("v_lshlrev_b32 v16, 16, v16")
    p("s_cmp_lt_u32 s2, 28")
    p("s_cselect_b32 s26, 0x%08x, 1.0" % f2u(math.log2(math.e) / 16))
    p("v_mul_f32 v16, s26, v16")
    p("s_lshl_b32 s10, s2, 7")
    p("buffer_store_dword v16, v5, s[20:23], s10 offen offset:%d" % MOD)
    p("s_endpgm")
    p("K0_LN:", "nowait")
    p("s_load_dwordx2 s[6:7], s[0:1], %d" % A_X)
    p("s_waitcnt lgkmcnt(0)")
    srd(p, 20, 4, WS_END)
    p("s_cmp_eq_u32 s2, %d" % (NMOD + NLN))
    p("s_cbranch_scc1 K0_ZERO")
    srd(p, 12, 6, 2048 * 896)
    p("s_sub_u32 s10, s2, %d" % NMOD)
    p("s_mul_i32 s10, s10, %d" % (32 * 896))
    p("v_lshrrev_b32 v1, 3, v0")
    p("v_and_b32 v2, 7, v0")
    p("v_mul_u32_u24 v3, 896, v1")
    p("v_lshl_add_u32 v3, v2, 4, v3")
    for m in range(7):
        p("buffer_load_dwordx4 v[%d:%d], v3, s[12:15], s10 offen offset:%d" % (4 + 4 * m, 7 + 4 * m, m * 128))
    p("s_sub_u32 s24, s2, %d" % NMOD)
    p("s_lshl_b32 s24, s24, 12")
    p("s_add_u32 s24, s24, %d" % STATS)
    p("v_lshlrev_b32 v88, 4, v0")
    for i in range(4): p("v_mov_b32 v%d, -1" % (92 + i))
    p("buffer_store_dwordx4 v[92:95], v88, s[20:23], s24 offen")
    ln_core(p, src=4, dst=32, tmp=90)
    for d in range(28):
        p("v_cvt_pk_bf16_f32 v%d, v%d, v%d" % (4 + d, 32 + 2 * d, 33 + 2 * d))
    p("s_add_u32 s10, s10, %d" % XN)
    p("v_lshlrev_b32 v3, 9, v2")
    p("v_lshl_add_u32 v3, v1, 4, v3")
    for m in range(7):
        if m: p("s_add_u32 s10, s10, 4096")
        p("buffer_store_dwordx4 v[%d:%d], v3, s[20:23], s10 offen" % (4 + 4 * m, 7 + 4 * m))
    p("s_endpgm")
    p("K0_ZERO:")
    p("v_lshlrev_b32 v1, 5, v0")
    for i in range(4): p("v_mov_b32 v%d, 0" % (4 + i))
    p("s_mov_b32 s10, %d" % FLAGS)
    p("buffer_store_dwordx4 v[4:7], v1, s[20:23], s10 offen")
    p("buffer_store_dwordx4 v[4:7], v1, s[20:23], s10 offen offset:16")
    p("s_endpgm")
    if pf:
        p("K0_PF:", "nowait")
        p("s_load_dwordx4 s[4:7], s[0:1], %d" % A_K)
        p("s_load_dwordx4 s[8:11], s[0:1], %d" % A_WQ)
        p("s_sub_u32 s3, s2, %d" % (NMOD + NLN + 1))
        p("s_lshl_b32 s3, s3, 14")
        p("v_lshl_add_u32 v1, v0, 6, s3")
        p("v_lshrrev_b32 v2, 18, v1")
        p("v_and_b32 v3, 0x3ffff, v1")
        p("v_lshl_add_u32 v2, v2, 20, v3")
        p("v_add_u32 v2, %d, v2" % (1536 * 512))
        p("v_add_u32 v4, %d, v1" % (107 * 16384))
        p("v_lshrrev_b32 v3, 18, v4")
        p("v_and_b32 v4, 0x3ffff, v4")
        p("v_lshl_add_u32 v3, v3, 20, v4")
        p("v_add_u32 v3, %d, v3" % (1536 * 512))
        srd(p, 12, 8, 448 * 8192)
        srd(p, 16, 4, 8388608)
        srd(p, 20, 6, 8388608)
        srd(p, 24, 10, 4096 * 896)
        k = 8
        for c in range(3):
            p("s_mov_b32 s28, %d" % (c * 107 * 16384)); p("buffer_load_dword v%d, v1, s[12:15], s28 offen" % k); k += 1
        for v in (2, 3):
            p("buffer_load_dword v%d, v%d, s[16:19], 0 offen" % (k, v)); k += 1
        if pf >= 2:
            for v in (2, 3):
                p("buffer_load_dword v%d, v%d, s[20:23], 0 offen" % (k, v)); k += 1
            for c in range(3):
                p("s_mov_b32 s28, %d" % (c * 107 * 16384)); p("buffer_load_dword v%d, v1, s[24:27], s28 offen" % k); k += 1
        p("s_waitcnt vmcnt(0)")
    p("K0_END:", "nowait")
    p("s_endpgm")
    return p, NMOD + NLN + 1 + NPF

def red8(p, r, t):
    p("v_add_f32_dpp v%d, v%d, v%d quad_perm:[1,0,3,2] row_mask:0xf bank_mask:0xf" % (r, r, r))
    p("v_add_f32_dpp v%d, v%d, v%d quad_perm:[2,3,0,1] row_mask:0xf bank_mask:0xf" % (r, r, r))
    p("v_add_f32_dpp v%d, v%d, v%d row_half_mirror row_mask:0xf bank_mask:0xf" % (r, r, r))

def ln_core(p, src, dst, tmp):
    for d in range(28):
        p("v_lshlrev_b32 v%d, 16, v%d" % (dst + 2 * d, src + d))
        p("v_and_b32 v%d, 0xffff0000, v%d" % (dst + 2 * d + 1, src + d))
    t = tmp
    p("v_pk_add_f32 v[%d:%d], v[%d:%d], v[%d:%d]" % (t, t + 1, dst, dst + 1, dst + 2, dst + 3))
    for d in range(2, 28):
        p("v_pk_add_f32 v[%d:%d], v[%d:%d], v[%d:%d]" % (t, t + 1, t, t + 1, dst + 2 * d, dst + 2 * d + 1))
    p("v_add_f32 v%d, v%d, v%d" % (t, t, t + 1))
    red8(p, t, None)
    p("v_mul_f32 v%d, 0x%08x, v%d" % (t, f2u(-1.0 / 448), t))
    p("v_mov_b32 v%d, v%d" % (t + 1, t))
    for d in range(28):
        p("v_pk_add_f32 v[%d:%d], v[%d:%d], v[%d:%d]" % (dst + 2 * d, dst + 2 * d + 1, dst + 2 * d, dst + 2 * d + 1, t, t + 1))
    p("v_pk_mul_f32 v[%d:%d], v[%d:%d], v[%d:%d]" % (t + 2, t + 3, dst, dst + 1, dst, dst + 1))
    for d in range(1, 28):
        p("v_pk_fma_f32 v[%d:%d], v[%d:%d], v[%d:%d], v[%d:%d]" % (t + 2, t + 3, dst + 2 * d, dst + 2 * d + 1, dst + 2 * d, dst + 2 * d + 1, t + 2, t + 3))
    p("v_add_f32 v%d, v%d, v%d" % (t + 2, t + 2, t + 3))
    red8(p, t + 2, None)
    p("v_mov_b32 v%d, 0x%08x" % (t + 3, f2u(1e-5)))
    p("v_fmac_f32 v%d, 0x%08x, v%d" % (t + 3, f2u(1.0 / 448), t + 2))
    p("v_rsq_f32 v%d, v%d" % (t + 2, t + 3))
    p("v_mov_b32 v%d, v%d" % (t + 3, t + 2))
    for d in range(28):
        p("v_pk_mul_f32 v[%d:%d], v[%d:%d], v[%d:%d]" % (dst + 2 * d, dst + 2 * d + 1, dst + 2 * d, dst + 2 * d + 1, t + 2, t + 3))

import struct
def f2u(x): return struct.unpack("<I", struct.pack("<f", x))[0]
```

```python
from fw import *
from layout import *
from sched import *
from k0 import f2u
import math

SLOT = 17408
NSLOT = 8
XBASE = NSLOT * SLOT
H1BASE = 6 * SLOT
H1STRIDE = 912
LDS_BYTES = 163840
PIB = [0, 2, 1, 3, 4, 6, 5, 7]

V_TRJ, V_TR, V_KB = 1, 4, 7
V_WQ, V_K, V_V, V_WO = 10, 14, 15, 16
V_XW, V_XR, V_L16 = 17, 18, 19
V_MAX, V_NMC, V_SUM, V_RCP, V_T = 20, 21, 22, 26, 27
QACC = 32
A_H1, A_Q, A_FR, A_S67 = 0, 128, 192, 224
A_O = 0
A_PO = 128
OACC = 32
OBF = 160
RAW = 160
CB = 216
UT = 248
V_QE, V_QO, V_CR = 20, 22, 31
CBASE = XBASE + 16384
A_ONE = 144
V_MB = 28
V_WE, V_WX = (1, 2), (3, 25)
NB = 8
S_W, S_G, S_TB = 3, 4, 5
SRD_WQ, SRD_K, SRD_V, SRD_WO, SRD_WS = 8, 12, 16, 20, 24
S_OWQ, S_OK, S_OV, S_OWO, S_M1088, S_M1040, S_C, S_OST, S_JMP = 28, 29, 30, 31, 32, 33, 34, 35, 38

def s_tile(t):
    if t < 6: return ("v", 160 + 16 * t)
    if t < 8: return ("a", A_S67 + 16 * (t - 6))
    return ("v", 32 + 16 * (t - 8))

def win(addr):
    w = addr // (3 * SLOT)
    return w, addr - w * 3 * SLOT

def gen_k1(D=4, budget=(24, 24, 30, 26), dbg=None, rep=1, pf=0, rate=(0.5, 0.34, 0.34, 0.572), gmap=2, pfn=1, verbose=0, early=1, npre=6, sub=1, kill=(), klow=0.2, margin=24, lastkk=4, cap=1.3, nx=4, dcost=8):
    p = Prog()
    p("s_cmp_ge_u32 s2, 256")
    p("s_cbranch_scc1 K1_END")
    p("s_load_dwordx2 s[40:41], s[0:1], %d" % A_WS)
    p("s_load_dwordx4 s[44:47], s[0:1], %d" % A_K)
    p("s_load_dwordx4 s[48:51], s[0:1], %d" % A_WQ)
    p("v_lshrrev_b32 v27, 6, v0")
    p("v_and_b32 v0, 63, v0")
    p("v_readfirstlane_b32 s%d, v27" % S_W)
    if rep > 1:
        p("s_mov_b32 s60, %d" % rep)
        p("K1_REP:")
        p.stamp(-1)
    if gmap == 1:
        p("s_and_b32 s%d, s2, 7" % S_G)
        p("s_lshr_b32 s%d, s2, 3" % S_TB)
    else:
        lg = {2: 1, 4: 2}[gmap]
        p("s_and_b32 s6, s2, %d" % (8 // gmap - 1))
        p("s_lshl_b32 s6, s6, %d" % lg)
        p("s_bfe_u32 s7, s2, 0x%x" % (3 | (lg << 16)))
        p("s_add_u32 s%d, s6, s7" % S_G)
        p("s_bfe_u32 s6, s2, 0x%x" % ((3 - lg) | (lg << 16)))
        p("s_lshl_b32 s6, s6, %d" % (5 - lg))
        p("s_lshr_b32 s7, s2, %d" % (3 + lg))
        p("s_add_u32 s%d, s6, s7" % S_TB)
    p("v_lshlrev_b32 v%d, 4, v0" % V_L16)
    if pfn:
        p("s_lshl_b32 s6, s2, 2")
        p("s_add_u32 s6, s6, s%d" % S_W)
        p("s_lshl_b32 s6, s6, 12")
        p("v_lshl_add_u32 v24, v0, 6, s6")
    p("s_lshr_b32 s7, s%d, 1" % S_W)
    p("s_lshl_b32 s6, s%d, 1" % S_TB)
    p("s_add_u32 s6, s6, s7")
    p("s_mul_i32 s39, s6, 28672")
    p("s_and_b32 s6, s%d, 1" % S_W)
    p("s_lshl_b32 s7, s6, 10")
    p("s_add_u32 s39, s39, s7")
    p("s_add_u32 s39, s39, %d" % XN)
    p("s_lshl_b32 s57, s6, 6")
    p("v_lshrrev_b32 v27, 3, v0")
    p("v_lshlrev_b32 v27, 7, v27")
    p("v_and_b32 v28, 4, v0")
    p("v_lshl_add_u32 v27, v28, 3, v27")
    p("v_and_b32 v28, 1, v0")
    p("v_lshl_add_u32 v27, v28, 4, v27")
    p("v_and_b32 v28, 2, v0")
    p("v_mul_u32_u24 v28, 896, v28")
    p("v_sub_u32 v25, v27, v28")
    p("v_add_u32 v25, 1792, v25")
    p("s_lshl_b32 s58, s%d, 11" % S_W)
    p("s_add_u32 s58, s58, %d" % CBASE)
    srd(p, SRD_WS, 40, WS_END)
    p("s_mov_b32 m0, s58")
    p("v_lshrrev_b32 v27, 5, v0")
    p("buffer_load_dwordx4 v25, s[24:27], s57 offen offset:%d lds" % MOD, "cst")
    p("buffer_load_dwordx4 v25, s[24:27], s57 offen offset:%d lds" % (MOD + 1024), "cst")
    p("v_lshl_add_u32 v%d, v27, 6, s58" % V_CR)
    def xload(P):
        pre = ["s_add_u32 s39, s39, 4096"] if (P and P % 2 == 0) else []
        return (pre, None, "buffer_load_dwordx4 v[%d:%d], v%d, s[24:27], s39 offen offset:%d" % (RAW + 4 * P, RAW + 4 * P + 3, V_L16, (P % 2) * 2048), ("x", P))
    def emit_pc(pc):
        for t in pc[0]: p(t)
        if pc[1]: p(pc[1]); p("s_nop 0")
        p(pc[2], pc[3])
    emit_pc(xload(0))
    if dbg == "pro": p.stamp(0)
    srd(p, SRD_WQ, 48, 448 * 8192)
    srd(p, SRD_K, 44, 8388608)
    srd(p, SRD_V, 46, 8388608)
    srd(p, SRD_WO, 50, 4096 * 896)
    p("v_lshrrev_b32 v27, 5, v0")
    p("v_and_b32 v29, 31, v0")
    p("v_lshlrev_b32 v30, 4, v29")
    p("v_lshl_add_u32 v%d, v27, 16, v30" % V_WQ)
    for e in range(1, 4):
        p("v_add_u32 v%d, %d, v%d" % (V_WQ + e, e * 8192, V_WQ))
    p("v_lshl_add_u32 v%d, v27, 13, v30" % V_K)
    p("v_lshl_add_u32 v%d, v27, 12, v30" % V_V)
    p("v_min_u32 v28, 55, v0")
    p("v_lshlrev_b32 v%d, 4, v28" % V_WO)
    p("s_and_b32 s6, s%d, 1" % S_W)
    p("s_lshr_b32 s7, s%d, 1" % S_W)
    p("s_lshl_b32 s%d, s6, 15" % S_OWQ)
    p("s_lshl_b32 s36, s%d, 10" % S_G)
    p("s_add_u32 s%d, s%d, s36" % (S_OWQ, S_OWQ))
    p("s_lshl_b32 s36, s7, 9")
    p("s_add_u32 s%d, s%d, s36" % (S_OWQ, S_OWQ))
    p("s_lshl_b32 s36, s%d, 20" % S_G)
    p("s_add_u32 s36, s36, %d" % (1536 * 512))
    p("s_lshl_b32 s37, s%d, 11" % S_W)
    p("s_add_u32 s%d, s36, s37" % S_OK)
    p("s_lshl_b32 s37, s7, 13")
    p("s_add_u32 s%d, s36, s37" % S_OV)
    p("s_lshl_b32 s37, s6, 11")
    p("s_add_u32 s%d, s%d, s37" % (S_OV, S_OV))
    p("s_lshl_b32 s36, s%d, 9" % S_G)
    p("s_lshl_b32 s37, s%d, 2" % S_W)
    p("s_add_u32 s36, s36, s37")
    p("s_mul_i32 s%d, s36, 896" % S_OWO)
    p("s_add_u32 s%d, s%d, %d" % (S_JMP, S_OWO, 256 * 896))
    p("s_mul_i32 s%d, s%d, 4352" % (S_M1088, S_W))
    p("s_mul_i32 s%d, s%d, 4160" % (S_M1040, S_W))
    p("s_mov_b32 s%d, 0x%08x" % (S_C, f2u(math.log2(math.e) / 16)))

    slabs = [("Q", i) for i in range(28)] + [("K", i) for i in range(16)] + [("V", i) for i in range(16)] + [("W", i) for i in range(32)]
    NS = len(slabs)
    worder = [(i // 2) + 16 * (i % 2) for i in range(32)]
    def slot_of(idx): return (idx % NSLOT) * SLOT
    def pieces(idx):
        kind, i = slabs[idx]
        so = slot_of(idx)
        out = []
        for e in range(4):
            pre = []
            if kind == "Q":
                if e == 0 and i > 0: pre.append("s_add_u32 s%d, s%d, %d" % (S_OWQ, S_OWQ, 131072))
                m0 = "s_add_u32 m0, s%d, %d" % (S_M1088, so + e * 1088)
                ld = "buffer_load_dwordx4 v%d, s[%d:%d], s%d offen lds" % (V_WQ + e, SRD_WQ, SRD_WQ + 3, S_OWQ)
            elif kind == "K":
                if e == 0 and i > 0: pre.append("s_add_u32 s%d, s%d, %d" % (S_OK, S_OK, 16384))
                m0 = "s_add_u32 m0, s%d, %d" % (S_M1040, so + e * (1040 - 512))
                ld = "buffer_load_dwordx4 v%d, s[%d:%d], s%d offen offset:%d lds" % (V_K, SRD_K, SRD_K + 3, S_OK, e * 512)
            elif kind == "V":
                if e == 0 and i > 0: pre.append("s_add_u32 s%d, s%d, %d" % (S_OV, S_OV, 16384))
                m0 = "s_add_u32 m0, s%d, %d" % (S_M1088, so + e * (1088 - 512))
                ld = "buffer_load_dwordx4 v%d, s[%d:%d], s%d offen offset:%d lds" % (V_V, SRD_V, SRD_V + 3, S_OV, e * 512)
            else:
                f = worder[i]
                sp = S_OWO if f < 16 else S_JMP
                if e == 0 and f % 16: pre.append("s_add_u32 s%d, s%d, %d" % (sp, sp, 16 * 896))
                m0 = "s_add_u32 m0, s%d, %d" % (S_M1088, so + e * (1088 - 896))
                ld = "buffer_load_dwordx4 v%d, s[%d:%d], s%d offen offset:%d lds" % (V_WO, SRD_WO, SRD_WO + 3, sp, e * 896)
            out.append((pre, m0, ld, ("slab", idx)))
        return out
    pro = pieces(0) + pieces(1) + [xload(1)] + pieces(2) + pieces(3) + [xload(P) for P in range(2, nx)] + pieces(4) + pieces(5) + [xload(P) for P in range(nx, 14)][:2] + pieces(6) + [xload(P) for P in range(nx, 14)][2:4] + pieces(7) + [xload(P) for P in range(nx, 14)][4:]
    cut = [k for k, pc in enumerate(pro) if pc[3] == ("slab", npre - 1)][-1] + 1
    for pc in pro[:cut]: emit_pc(pc)
    pro = pro[cut:]
    pfl = []
    if pf:
        lg = {1: 0, 2: 1, 4: 2}[gmap]
        sh = {64: 6, 128: 7}[pf]
        nl = (1 << 13) // gmap
        p("s_lshr_b32 s6, s2, %d" % (3 + lg))
        p("s_lshl_b32 s6, s6, 8")
        p("s_lshl_b32 s7, s%d, 6" % S_W)
        p("s_add_u32 s6, s6, s7")
        p("v_add_u32 v27, s6, v0")
        p("v_lshlrev_b32 v26, %d, v27" % sh)
        p("v_lshrrev_b32 v29, %d, v27" % (10 - sh))
        p("v_and_b32 v30, %d, v27" % ((1024 >> sh) - 1))
        p("v_lshlrev_b32 v30, %d, v30" % sh)
        p("v_lshl_add_u32 v30, v29, 13, v30")
        p("s_lshl_b32 s59, s%d, 10" % S_G)
        p("s_lshl_b32 s61, s%d, 20" % S_G)
        p("s_add_u32 s61, s61, %d" % (1536 * 512))
        p("s_mul_i32 s62, s%d, %d" % (S_G, 512 * 896))
        span = nl << sh
        k = 96
        for c in range((448 * 1024 + span - 1) // span):
            pre = ["s_add_u32 s59, s59, %d" % (span * 8)] if c else []
            pfl.append((0, (pre, None, "buffer_load_dword a%d, v30, s[%d:%d], s59 offen" % (k, SRD_WQ, SRD_WQ + 3), ("pf", k)))); k += 1
        for (srdn, sreg, size, at) in ((SRD_K, 61, 262144, 60), (SRD_V, 61, 262144, 240), (SRD_WO, 62, 512 * 896, 300)):
            for c in range((size + span - 1) // span):
                pre = ["s_add_u32 s63, s%d, %d" % (sreg, c * span)]
                pfl.append((at, (pre, None, "buffer_load_dword a%d, v26, s[%d:%d], s63 offen" % (k, srdn, srdn + 3), ("pf", k)))); k += 1
        assert k <= 112
        while pfl and pfl[0][0] == 0: pro.insert(0, pfl.pop(0)[1]) if False else pro.append(pfl.pop(0)[1])
        pw = [pc for pc in pro if pc[3][0] == "pf"]
        pro = pw + [pc for pc in pro if pc[3][0] != "pf"]

    if dbg == "pro": p.stamp(1)
    p("v_bfe_u32 v27, v0, 2, 2")
    p("v_mul_u32_u24 v%d, 1088, v27" % V_TR)
    p("v_lshrrev_b32 v27, 5, v0")
    p("v_lshl_add_u32 v%d, v27, 9, v%d" % (V_TR, V_TR))
    p("v_and_b32 v27, 1, v0")
    p("v_lshlrev_b32 v27, 4, v27")
    p("v_and_b32 v28, 2, v0")
    p("v_lshl_add_u32 v27, v28, 2, v27")
    p("v_and_b32 v28, 16, v0")
    p("v_lshl_add_u32 v27, v28, 1, v27")
    p("v_add_u32 v%d, v%d, v27" % (V_TR, V_TR))
    p("s_and_b32 s6, s%d, 1" % S_W)
    p("s_mul_i32 s6, s6, %d" % (8 * 1088))
    p("v_add_u32 v%d, s6, v%d" % (V_TRJ, V_TR))
    p("s_and_b32 s6, s%d, 1" % S_W)
    p("s_mul_i32 s7, s6, %d" % SLOT)
    p("v_add_u32 v%d, s7, v%d" % (V_QE, V_TRJ))
    p("s_sub_u32 s7, %d, s7" % SLOT)
    p("v_add_u32 v%d, s7, v%d" % (V_QO, V_TRJ))
    p("v_add_u32 v%d, %d, v%d" % (V_QE + 1, 4 * SLOT, V_QE))
    p("v_add_u32 v%d, %d, v%d" % (V_QO + 1, 4 * SLOT, V_QO))
    p("v_and_b32 v27, 3, v0")
    p("v_and_b32 v28, 4, v0")
    p("v_lshl_add_u32 v27, v28, 1, v27")
    p("v_and_b32 v28, 8, v0")
    p("v_lshrrev_b32 v28, 1, v28")
    p("v_add_u32 v27, v27, v28")
    p("v_mul_u32_u24 v%d, 1040, v27" % V_KB)
    p("v_and_b32 v28, 16, v0")
    p("v_lshl_add_u32 v%d, v28, 5, v%d" % (V_KB, V_KB))
    p("v_lshrrev_b32 v28, 5, v0")
    p("v_lshl_add_u32 v%d, v28, 4, v%d" % (V_KB, V_KB))
    p("v_lshrrev_b32 v27, 5, v0")
    p("v_mul_u32_u24 v27, %d, v27" % (8704 - 512))
    p("v_add_u32 v27, v27, v%d" % V_TR)
    p("s_and_b32 s6, s%d, 1" % S_W)
    p("s_mul_i32 s7, s6, %d" % (SLOT + 448))
    p("v_add_u32 v%d, s7, v27" % V_WE[0])
    p("s_mul_i32 s7, s6, %d" % (448 - SLOT))
    p("s_add_u32 s7, s7, %d" % SLOT)
    p("v_add_u32 v%d, s7, v27" % V_WX[0])
    p("v_add_u32 v%d, %d, v%d" % (V_WE[1], 4 * SLOT, V_WE[0]))
    p("v_add_u32 v%d, %d, v%d" % (V_WX[1], 4 * SLOT, V_WX[0]))
    for base in (V_TR, V_KB):
        p("v_add_u32 v%d, %d, v%d" % (base + 1, 3 * SLOT, base))
        p("v_add_u32 v%d, %d, v%d" % (base + 2, 6 * SLOT, base))
    p("s_lshl_b32 s6, s%d, 12" % S_W)
    p("s_add_u32 s6, s6, %d" % XBASE)
    p("v_add_u32 v%d, s6, v%d" % (V_XW, V_L16))
    p("v_xor_b32 v%d, 4096, v%d" % (V_XR, V_XW))
    p("s_lshr_b32 s6, s%d, 1" % S_W)
    p("s_lshl_b32 s7, s%d, 1" % S_TB)
    p("s_add_u32 s6, s6, s7")
    p("s_lshl_b32 s6, s6, 3")
    p("s_add_u32 s6, s6, s%d" % S_G)
    p("s_mul_i32 s%d, s6, 28672" % S_OST)
    p("s_and_b32 s6, s%d, 1" % S_W)
    p("s_mul_i32 s6, s6, %d" % (28 * 512))
    p("s_add_u32 s%d, s%d, s6" % (S_OST, S_OST))
    p("s_add_u32 s%d, s%d, %d" % (S_OST, S_OST, PART))
    def cst_reads(P):
        return ["ds_read_b128 v[%d:%d], v%d offset:%d" % (CB + 16 * (P % 2) + 4 * q, CB + 16 * (P % 2) + 4 * q + 3, V_CR, P * 128 + 16 * q) for q in range(4)]
    def modul(P):
        o = []
        r = RAW + 4 * P; cb = CB + 16 * (P % 2)
        for d in range(4):
            o.append("v_lshlrev_b32 v%d, 16, v%d" % (UT + 2 * d, r + d))
            o.append("v_and_b32 v%d, 0xffff0000, v%d" % (UT + 2 * d + 1, r + d))
        for d in range(4):
            o.append("v_fma_f32 v%d, v%d, v%d, v%d" % (UT + 2 * d, UT + 2 * d, cb + 2 * d, cb + 8 + 2 * d))
            o.append("v_fma_f32 v%d, v%d, v%d, v%d" % (UT + 2 * d + 1, UT + 2 * d + 1, cb + 2 * d + 1, cb + 9 + 2 * d))
        for d in range(4):
            o.append("v_cvt_pk_bf16_f32 v%d, v%d, v%d" % (r + d, UT + 2 * d, UT + 2 * d + 1))
        return o
    def hwrite(P): return "ds_write_b128 v%d, v[%d:%d] offset:%d" % (V_XW, RAW + 4 * P, RAW + 4 * P + 3, (P % 4) * 1024)
    p.wait_vm("cst")
    for t in cst_reads(0) + cst_reads(1): p(t)
    for t in modul(0): p(t)
    p(hwrite(0), ("hw", 0))
    if dbg == "pro": p.stamp(2)

    mf = []
    def tr_reads(basereg, addr):
        out = []
        for q in range(2):
            w, off = win(addr[0])
            out.append(("tr", basereg + w, off + addr[1] + 4 * q * 1088, q))
        return out
    order = [(ks, t) for ks in range(26) for t in range(8)] + [(ks, t) for t in range(8) for ks in (26, 27)]
    for (ks, t) in order:
        P = ks // 2
        so = slot_of(2 * P)
        reg = (V_QE if ks % 2 == 0 else V_QO) + so // (4 * SLOT)
        rd = [("tr", reg, so % (4 * SLOT) + 64 * t + 4 * q * 1088, q) for q in range(2)]
        mf.append(dict(slab=ks, pair=True, acc=("v", QACC + 16 * t), first=(ks == 0), B=("v", RAW + 4 * P) if ks % 2 == 0 else ("a", A_H1 + 4 * P), reads=rd))
    S0 = len(mf)
    for mt in range(16):
        for ks in range(16):
            idx = 28 + mt
            w, off = win(slot_of(idx))
            if mt < 5: B = ("v", QACC + 16 * (ks // 2) + 4 * (ks % 2))
            else: B = ("a", A_Q + 4 * ks)
            mf.append(dict(slab=idx, acc=s_tile(mt), first=(ks == 0), B=B, reads=[("b128", V_KB + w, off + 32 * ks, 0)]))
    P0 = len(mf)
    def p_frag(kk):
        t, hh = kk // 2, kk % 2
        f, b = s_tile(t)
        if f == "v": return b + 8 * hh
        return s_tile(1 + (t - 6))[1] + 4 + 8 * hh
    sub_at = {}
    kk_start = {}
    tile_done = {}
    def add_sub(t):
        sub_at[t] = len(mf)
        mf.append(dict(slab=None, acc=s_tile(t), first=False, B=("v", V_MB), A=A_ONE, reads=[]))
    if sub:
        for t in range(3): add_sub(t)
    order = [(kk, t) for kk in range(32 - lastkk) for t in range(8)] + [(kk, t) for t in range(8) for kk in range(32 - lastkk, 32)]
    for (kk, t) in order:
        idx = 44 + kk // 2
        if sub and t == 4 and kk % 2 == 0 and kk // 2 + 3 < 16: add_sub(kk // 2 + 3)
        kk_start.setdefault(kk, len(mf))
        tile_done[t] = len(mf)
        mf.append(dict(slab=idx, acc=("a", A_O + 16 * t), first=(kk == 0), B=("v", p_frag(kk)),
                       reads=tr_reads(V_TR, (slot_of(idx), (8 * (kk % 2)) * 1088 + 64 * t))))
    W0 = len(mf)
    w_start = {}
    order = [(s, t) for s in range(30) for t in range(7)] + [(s, t) for t in range(7) for s in (30, 31)]
    for (s, t) in order:
        idx = 60 + s
        f = worder[s]
        w_start.setdefault(f, len(mf))
        B = ("v", OBF + 4 * f) if f < 16 else ("a", A_PO + 4 * (f - 16))
        so = slot_of(idx - idx % 2)
        reg = (V_WE if s % 2 == 0 else V_WX)[so // (4 * SLOT)]
        rd = [("tr", reg, so % (4 * SLOT) + 64 * t + 4 * q * 1088, q) for q in range(2)]
        mf.append(dict(slab=idx, pair=True, acc=("v", OACC + 16 * t), first=(s == 0), B=B, reads=rd))
    N = len(mf)
    late_fill = []
    last_use = {}
    first_use = {}
    for n, m in enumerate(mf):
        if m["slab"] is None: continue
        last_use[m["slab"]] = n
        if m.get("pair"): last_use[m["slab"] ^ 1] = n
        first_use.setdefault(m["slab"] // 2 * 2, n)
    rgap = {}
    seq = [n for n in range(N) if mf[n]["slab"] is not None]
    for n in seq: rgap[n] = n - D
    if early:
        for sl, b0 in first_use.items():
            prev = [n for n in seq if n < b0][-4:]
            if len(prev) == 4:
                g0 = b0 - D
                rgap[prev[3]] = min(rgap[prev[3]], g0 - 3); rgap[prev[2]] = min(rgap[prev[2]], g0 - 3)
                rgap[prev[1]] = min(rgap[prev[1]], g0 - 4); rgap[prev[0]] = min(rgap[prev[0]], g0 - 4)
    fbuf = {n: k % NB for k, n in enumerate(seq)}
    for k, n in enumerate(seq):
        if k >= NB: assert rgap[n] >= seq[k - NB], (n, rgap[n], seq[k - NB])
        if k: assert rgap[n] >= rgap[seq[k - 1]]

    sc = Sched(p, 24)
    for P in range(1, 14):
        dl = 16 * P - D - 3
        rd = max(-1, 16 * (P - 1) - D - 2)
        blk = modul(P)
        for t in blk[:8]: sc.filler(t, rd, dl)
        for t in blk[8:16]: sc.filler(t, rd, dl)
        if P + 1 < 14:
            for t in cst_reads(P + 1): sc.filler(t, rd, dl)
        for t in blk[16:]: sc.filler(t, rd, dl)
        sc.filler(hwrite(P), rd, dl, ("hw", P))
    if sub:
        for tx in ["v_mov_b32 v%d, 0x3f803f80" % V_T, "v_accvgpr_write_b32 a%d, v%d" % (A_ONE, V_T)] + ["v_accvgpr_write_b32 a%d, 0" % (A_ONE + i) for i in (1, 2, 3)]:
            late_fill.append(tx)
        for i in (1, 2, 3): late_fill.append("v_mov_b32 v%d, 0" % (V_MB + i))
    for t in range(8):
        rdy = S0 - 16 + 2 * t + 1 + 3
        b = QACC + 16 * t
        for i in range(8):
            sc.filler("v_cvt_pk_bf16_f32 v%d, v%d, v%d" % (b + i, b + 2 * i, b + 2 * i + 1), rdy, S0 + 2 * t + (i // 4) - 1)
    qcopy = []
    for t in range(8):
        for i in range(8):
            qcopy.append("v_accvgpr_write_b32 a%d, v%d" % (A_Q + 8 * t + i, QACC + 16 * t + i))
    for mt in range(16):
        rdy = S0 + 16 * mt + 15 + 3
        if mt == 15:
            rdy = P0
            for tx in late_fill: sc.filler(tx, P0 - 9, P0)
        f, b = s_tile(mt)
        if mt < 4:
            for tx in qcopy[16 * mt:16 * mt + 16]:
                sc.filler(tx, S0 + 16 * mt, S0 + 16 * 5 - 1)
        if f == "v":
            vals = list(range(b, b + 16))
            if mt == 0:
                sc.filler("v_max3_f32 v%d, v%d, v%d, v%d" % (V_MAX, vals[0], vals[1], vals[2]), rdy, P0)
                sc.filler("v_max_f32 v%d, v%d, v%d" % (V_MAX, V_MAX, vals[3]), rdy, P0)
                vals = vals[4:]
            for i in range(0, len(vals), 2):
                sc.filler("v_max3_f32 v%d, v%d, v%d, v%d" % (V_MAX, V_MAX, vals[i], vals[i + 1]), rdy, P0)
        else:
            for i in range(0, 16, 2):
                sc.filler("v_accvgpr_read_b32 v%d, a%d" % (V_T, b + i), rdy, P0)
                sc.filler("v_accvgpr_read_b32 v%d, a%d" % (V_T + 1, b + i + 1), rdy, P0)
                sc.filler("v_max3_f32 v%d, v%d, v%d, v%d" % (V_MAX, V_MAX, V_T, V_T + 1), rdy, P0)
    fin = ["v_mov_b32 v%d, v%d" % (V_T, V_MAX),
           "v_permlane32_swap_b32 v%d, v%d" % (V_MAX, V_T)]
    if sub:
        fin += ["v_max_f32 v%d, v%d, v%d" % (V_MAX, V_MAX, V_T),
                "v_mul_f32 v%d, -0.5, v%d" % (V_MAX, V_MAX),
                "v_and_b32 v%d, 0xffff0000, v%d" % (V_T, V_MAX),
                "v_sub_f32 v%d, v%d, v%d" % (V_MAX, V_MAX, V_T),
                "v_cvt_pk_bf16_f32 v%d, v%d, v%d" % (V_MB, V_T, V_MAX)]
    else:
        fin += ["v_max_f32 v%d, v%d, v%d" % (V_NMC, V_MAX, V_T)]
    for tx in fin: sc.filler(tx, P0, P0)
    for kk in range(32):
        t, hh = kk // 2, kk % 2
        f, b = s_tile(t)
        dl = kk_start[kk] - (0 if kk == 0 else 1)
        rdy = sub_at[t] + 2 if sub else P0 - 1
        dst = p_frag(kk)
        if f == "v":
            vals = [b + 8 * hh + i for i in range(8)]
        else:
            t0 = s_tile(0)[1]
            vals = [t0 + 4 + i for i in range(4)] + [t0 + 12 + i for i in range(4)]
        blk = []
        for i in range(0, 8, 2):
            x, y = vals[i], vals[i + 1]
            o = []
            if f == "a":
                o.append("v_accvgpr_read_b32 v%d, a%d" % (x, b + 8 * hh + i))
                o.append("v_accvgpr_read_b32 v%d, a%d" % (y, b + 8 * hh + i + 1))
            if not sub:
                o.append("v_sub_f32 v%d, v%d, v%d" % (x, x, V_NMC))
                o.append("v_sub_f32 v%d, v%d, v%d" % (y, y, V_NMC))
            o.append("v_exp_f32 v%d, v%d" % (x, x))
            o.append("v_exp_f32 v%d, v%d" % (y, y))
            q = []
            if kk == 0 and i == 0:
                q.append("v_mov_b32 v%d, v%d" % (V_SUM, x))
                q.append("v_mov_b32 v%d, v%d" % (V_SUM + 1, y))
            else:
                q.append("v_add_f32 v%d, v%d, v%d" % (V_SUM, V_SUM, x))
                q.append("v_add_f32 v%d, v%d, v%d" % (V_SUM + 1, V_SUM + 1, y))
            q.append("v_cvt_pk_bf16_f32 v%d, v%d, v%d" % (dst + i // 2, x, y))
            blk.append((o, q))
        seqi = blk[0][0][:]
        for i in range(4):
            nx = blk[i + 1][0] if i < 3 else []
            q = blk[i][1]
            seqi += nx[:-1] + [q[0]] + nx[-1:] + q[1:]
        for t_ in seqi: sc.filler(t_, rdy, dl)
    fdl = tile_done[0] + 3
    for tx in ["v_add_f32 v%d, v%d, v%d" % (V_SUM, V_SUM, V_SUM + 1),
               "v_mov_b32 v%d, v%d" % (V_T, V_SUM),
               "v_permlane32_swap_b32 v%d, v%d" % (V_SUM, V_T),
               "v_add_f32 v%d, v%d, v%d" % (V_SUM, V_SUM, V_T),
               "v_rcp_f32 v%d, v%d" % (V_RCP, V_SUM)]:
        sc.filler(tx, P0, fdl)
    for s in range(16):
        t, hh = s // 2, s % 2
        rdy = tile_done[t] + 3
        dl = w_start[s] - D - 4
        for i in range(0, 8, 2):
            x, y = V_T + (i // 2 % 2) * 2, V_T + (i // 2 % 2) * 2 + 1
            sc.filler("v_accvgpr_read_b32 v%d, a%d" % (x, A_O + 16 * t + 8 * hh + i), rdy, dl)
            sc.filler("v_accvgpr_read_b32 v%d, a%d" % (y, A_O + 16 * t + 8 * hh + i + 1), rdy, dl)
            sc.filler("v_mul_f32 v%d, v%d, v%d" % (x, x, V_RCP), rdy, dl)
            sc.filler("v_mul_f32 v%d, v%d, v%d" % (y, y, V_RCP), rdy, dl)
            sc.filler("v_cvt_pk_bf16_f32 v%d, v%d, v%d" % (OBF + 4 * s + i // 2, x, y), rdy, dl, ("conv", s) if i == 6 else None)
    for t in range(7):
        rdy = N - 14 + 2 * t + 1 + 3
        b = OACC + 16 * t
        for e in range(2):
            for i in range(4):
                sc.filler("v_cvt_pk_bf16_f32 v%d, v%d, v%d" % (b + 8 * e + i, b + 8 * e + 2 * i, b + 8 * e + 2 * i + 1), rdy)
            off = (4 * t + 2 * e) * 512
            if off and off % 4096 == 0: sc.filler("s_add_u32 s%d, s%d, 4096" % (S_OST, S_OST), rdy)
            sc.filler("buffer_store_dwordx4 v[%d:%d], v%d, s[24:27], s%d offen offset:%d" % (b + 8 * e, b + 8 * e + 3, V_L16, S_OST, off % 4096), rdy)

    certified = set()
    landed = set()
    dmaq = deque(pro)
    extra = deque()
    state = dict(issued=8, xw=0, xr=0, xw_ok=0, nbar=0, cred=1.0, lastrd=None)
    issue_at = {}
    pfq = deque()
    if pfn:
        for (arg, size, cnt) in ((A_WSP, 2048 * 4096, 2), (A_WIN, 448 * 3584, 1), (A_WOUT, 896 * 896, 1)):
            for c in range(cnt):
                pfq.append(["s_load_dwordx2 s[52:53], s[0:1], %d" % arg, "s_mov_b32 s54, %d" % size, "s_mov_b32 s55, 0x00020000", "s_mov_b32 s56, %d" % (c << 22)])
                pfq.append(["buffer_load_dword a%d, v24, s[52:55], s56 offen" % (112 + len(pfq))])
    conv_done = lambda: len({i.tag[1] for i in p.ins[-4000:] if isinstance(i.tag, tuple) and i.tag[0] == "conv"})
    def barrier(n, slab):
        if verbose and n >= 0: print("bar at", n, "slab", slab, "slack", n - issue_at.get(min(slab + 1, NS - 1), -99))
        p.wait_vm(("slab", min(slab + 1, NS - 1)))
        if slab < 28: p.wait_lgkm(("hw", slab // 2))
        if early and state["lastrd"] is not None: p.wait_lgkm(state["lastrd"])
        if slab >= 60: assert state["xw"] > (slab - 60) // 2, (slab, state)
        if state["xw"]: p.wait_lgkm(("xw", state["xw"] - 1))
        if state["xr"]: p.wait_lgkm(("xr", state["xr"] - 1))
        p("s_barrier")
        state["nbar"] += 1
        landed.add(slab); landed.add(slab + 1)
        for s_, lu in last_use.items():
            if (s_ < slab) if early else (lu <= n): certified.add(s_)
        while state["issued"] < NS:
            k = state["issued"]
            if (k - NSLOT) not in certified: break
            for pc in pieces(k): dmaq.append(pc)
            state["issued"] += 1
        if slab < 28:
            P = slab // 2
            p("ds_read_b128 a[%d:%d], v%d offset:%d" % (A_H1 + 4 * P, A_H1 + 4 * P + 3, V_XR, (P % 4) * 1024))
        if slab >= 56:
            for f in range(state["xr"] + len(extra), state["xw"]):
                extra.append(("ds_read_b128 a[%d:%d], v%d offset:%d" % (A_PO + 4 * f, A_PO + 4 * f + 3, V_XR, (f % 4) * 1024), ("xr", f)))
            state["xw_ok"] = min(16, state["xr"] + 4)
    def emit_reads(n, cur):
        m = mf[n]
        used = 0
        if m["slab"] not in landed:
            while any(pc[3][0] == "slab" and pc[3][1] <= m["slab"] + 1 for pc in dmaq):
                pc = dmaq.popleft()
                if pc[3][0] == "slab": issue_at[pc[3][1]] = cur
                emit_pc(pc)
            barrier(cur, m["slab"] - m["slab"] % 2)
            used += 8
            if cur < 0 and dbg == "pro": p.stamp(3)
        fb = A_FR + 4 * fbuf[n]
        txt = []
        for (kind, reg, off, q) in m["reads"]:
            if kind == "tr": txt.append(("ds_read_b64_tr_b16 a[%d:%d], v%d offset:%d" % (fb + 2 * q, fb + 2 * q + 1, reg, off), ("rd", n)))
            else: txt.append(("ds_read_b128 a[%d:%d], v%d offset:%d" % (fb, fb + 3, reg, off), ("rd", n)))
        state["lastrd"] = ("rd", n)
        return txt, used
    rq = deque(seq)
    while rgap[rq[0]] < 0:
        txt, _ = emit_reads(rq.popleft(), -1)
        for t in txt: p(*t)
    for n in range(N):
        m = mf[n]
        ph = 0 if n < S0 else 1 if n < P0 else 2 if n < W0 else 3
        sc.budget = budget[ph]
        sc.flush_deadline(n)
        if dbg == "pro":
            if n == 0: p.stamp(4)
        elif isinstance(dbg, list):
            if n in dbg: p.stamp(dbg.index(n))
        elif n in (0, S0, P0, W0): p.stamp((0, S0, P0, W0).index(n))
        fb = m["A"] if "A" in m else A_FR + 4 * fbuf[n]
        af, ab = m["acc"]; bf, bb = m["B"]
        acc = "%s[%d:%d]" % (af, ab, ab + 15)
        p("v_mfma_f32_32x32x16_bf16 %s, a[%d:%d], %s[%d:%d], %s" % (acc, fb, fb + 3, bf, bb, bb + 3, "0" if m["first"] else acc))
        used = 2
        txt = []
        while rq and rgap[rq[0]] <= n:
            t_, u = emit_reads(rq.popleft(), n)
            assert not (u and txt)
            txt += t_; used += u
        while pfl and pfl[0][0] <= n: dmaq.appendleft(pfl.pop(0)[1])
        pc = None
        r_ = rate[ph]
        force = False
        if dmaq and dmaq[0][3][0] == "slab":
            sl = dmaq[0][3][1]
            if ph == 0 and sl >= 28: r_ = klow
            left = sum(1 for pc_ in dmaq if pc_[3][0] == "slab" and pc_[3][1] // 2 == sl // 2)
            force = n >= first_use[sl // 2 * 2] - D - margin - 2 * (left - 1)
        state["cred"] = min(state["cred"] + r_, cap)
        if force: state["cred"] = max(state["cred"], 1.0)
        if pfq and n >= S0 + 40 and n % 4 == 2 and not (dmaq and state["cred"] >= 1) and len(txt) <= 2:
            for t in pfq.popleft(): p(t); used += 4
        elif dmaq and state["cred"] >= 1.0:
            pc = dmaq.popleft()
            state["cred"] -= 1.0
            if pc[3][0] == "slab": issue_at[pc[3][1]] = n
            for t in pc[0]: p(t); used += 4
            if pc[1]: p(pc[1]); used += 4
        if txt:
            p(*txt[0]); used += 4
        elif pc and pc[1]: p("s_nop 0")
        if pc:
            p(pc[2], pc[3]); used += dcost
        for t in txt[1:]:
            p(*t); used += 4
        if state["xw"] < state["xw_ok"] and state["xw"] < conv_done():
            f = state["xw"]
            p("ds_write_b128 v%d, v[%d:%d] offset:%d" % (V_XW, OBF + 4 * f, OBF + 4 * f + 3, (f % 4) * 1024), ("xw", f))
            state["xw"] += 1; used += 8
        elif extra:
            t, tag = extra.popleft()
            p(t, tag); state["xr"] += 1; used += 4
        if n + 1 < N and mf[n + 1]["B"][0] == "a" and n + 1 >= W0:
            assert state["xr"] > (mf[n + 1]["B"][1] - A_PO) // 4, ("xr late", n, state)
        sc.fill_gap(n, used)
    if dbg is None: p.stamp(4)
    sc.flush_all()
    assert state["xr"] == 16 and state["xw"] == 16, state
    assert not dmaq and state["issued"] == NS and not pfl and not pfq
    if rep > 1:
        p("s_waitcnt vmcnt(0) lgkmcnt(0)")
        p("s_barrier")
        p("s_sub_u32 s60, s60, 1")
        p("s_cmp_lg_u32 s60, 0")
        p("s_cbranch_scc1 K1_REP")
    if "dma" in kill: p.ins = [i for i in p.ins if not (i.kind == "dma" and isinstance(i.tag, tuple) and i.tag[1] >= 8)]
    if "vmw" in kill: p.ins = [i for i in p.ins if not (i.op == "PSEUDO_WAITVM" and isinstance(i.tag, tuple) and i.tag[1] >= 8)]
    if "bar" in kill: p.ins = [i for i in p.ins if i.kind != "barrier"]
    if "valu" in kill:
        k0 = [k for k, i in enumerate(p.ins) if i.kind == "mfma32"][0]
        p.ins = [i for k, i in enumerate(p.ins) if not (k > k0 and i.kind in ("valu", "trans", "perm"))]
    if "rd" in kill:
        k0 = [k for k, i in enumerate(p.ins) if i.kind == "mfma32"][0]
        p.ins = [i for k, i in enumerate(p.ins) if not (k > k0 and i.kind in ("dsr", "dsw"))]
    p("K1_END:", "nowait")
    p("s_endpgm")
    return p
```

```python
from fw import *
from layout import *
from k0 import f2u

def gen_k2a():
    p = Prog()
    p("s_cmp_ge_u32 s2, 256")
    p("s_cbranch_scc1 K2A_END")
    p.stamp(3)
    p("s_load_dwordx2 s[4:5], s[0:1], %d" % A_WS)
    p("s_load_dwordx2 s[6:7], s[0:1], %d" % A_X)
    p.stamp(4)
    p("v_lshrrev_b32 v1, 3, v0")
    p("v_and_b32 v2, 7, v0")
    p("v_lshlrev_b32 v3, 9, v1")
    p("v_lshl_add_u32 v3, v2, 4, v3")
    p("v_mul_u32_u24 v4, 896, v2")
    p("v_lshl_add_u32 v4, v1, 4, v4")
    p("v_lshlrev_b32 v5, 5, v1")
    p("s_lshr_b32 s8, s2, 2")
    p("s_and_b32 s9, s2, 3")
    p("s_lshl_b32 s9, s9, 7")
    p("s_mul_i32 s10, s8, 229376")
    p("s_add_u32 s10, s10, s9")
    p("s_add_u32 s10, s10, %d" % PART)
    p("s_mul_i32 s11, s2, %d" % (8 * 896))
    srd(p, 12, 4, WS_END)
    srd(p, 16, 6, 2048 * 896)
    PD = 8
    for g in range(8):
        p("buffer_load_dwordx4 v[%d:%d], v3, s[12:15], s10 offen" % (PD + 4 * g, PD + 4 * g + 3))
        if g < 7: p("s_add_u32 s10, s10, 28672")
    XD = 40
    p("buffer_load_dwordx4 v[40:43], v4, s[16:19], s11 offen")
    GA, SB, C1 = 44, 52, 60
    p("s_movk_i32 s20, %d" % (MOD + 2 * 1792))
    for i, r in enumerate((GA, SB, C1)):
        for h in range(2):
            p("buffer_load_dwordx4 v[%d:%d], v5, s[12:15], s20 offen offset:%d" % (r + 4 * h, r + 4 * h + 3, i * 1792 + 16 * h))
    p.stamp(0)
    p("s_mul_i32 s21, s8, 28672")
    p("s_add_u32 s21, s21, s9")
    p("s_add_u32 s22, s21, %d" % H2)
    p("s_add_u32 s21, s21, %d" % X2)
    p("v_lshrrev_b32 v6, 6, v0")
    p("v_lshlrev_b32 v7, 3, v2")
    p("v_lshl_add_u32 v6, v6, 6, v7")
    ACC, T = 68, 76
    for g in range(8):
        for d in range(4):
            s = PD + 4 * g + d
            t = ACC + 2 * d if g == 0 else T + 2 * d
            p("v_lshlrev_b32 v%d, 16, v%d" % (t, s))
            p("v_and_b32 v%d, 0xffff0000, v%d" % (t + 1, s))
        if g:
            for d in range(4):
                p("v_pk_add_f32 v[%d:%d], v[%d:%d], v[%d:%d]" % (ACC + 2 * d, ACC + 2 * d + 1, ACC + 2 * d, ACC + 2 * d + 1, T + 2 * d, T + 2 * d + 1))
    for d in range(4):
        p("v_lshlrev_b32 v%d, 16, v%d" % (T + 2 * d, XD + d))
        p("v_and_b32 v%d, 0xffff0000, v%d" % (T + 2 * d + 1, XD + d))
    for d in range(4):
        p("v_pk_fma_f32 v[%d:%d], v[%d:%d], v[%d:%d], v[%d:%d]" % (ACC + 2 * d, ACC + 2 * d + 1, ACC + 2 * d, ACC + 2 * d + 1, GA + 2 * d, GA + 2 * d + 1, T + 2 * d, T + 2 * d + 1))
    for d in range(4):
        p("v_cvt_pk_bf16_f32 v%d, v%d, v%d" % (8 + d, ACC + 2 * d, ACC + 2 * d + 1))
    p("buffer_store_dwordx4 v[8:11], v3, s[12:15], s21 offen")
    for d in range(4):
        p("v_lshlrev_b32 v%d, 16, v%d" % (ACC + 2 * d, 8 + d))
        p("v_and_b32 v%d, 0xffff0000, v%d" % (ACC + 2 * d + 1, 8 + d))
    p.stamp(1)
    p("v_pk_add_f32 v[12:13], v[%d:%d], v[%d:%d]" % (ACC, ACC + 1, ACC + 2, ACC + 3))
    p("v_pk_mul_f32 v[14:15], v[%d:%d], v[%d:%d]" % (ACC, ACC + 1, ACC, ACC + 1))
    for d in range(1, 4):
        if d > 1: p("v_pk_add_f32 v[12:13], v[12:13], v[%d:%d]" % (ACC + 2 * d, ACC + 2 * d + 1))
        p("v_pk_fma_f32 v[14:15], v[%d:%d], v[%d:%d], v[14:15]" % (ACC + 2 * d, ACC + 2 * d + 1, ACC + 2 * d, ACC + 2 * d + 1))
    p("v_add_f32 v12, v12, v13")
    p("v_add_f32 v13, v14, v15")
    for r in (12, 13):
        p("v_add_f32_dpp v%d, v%d, v%d row_ror:8 row_mask:0xf bank_mask:0xf" % (r, r, r))
    for sw in ("v_permlane16_swap_b32", "v_permlane32_swap_b32"):
        p("v_mov_b32 v14, v12")
        p("v_mov_b32 v15, v13")
        p("%s v12, v14" % sw)
        p("%s v13, v15" % sw)
        p("v_add_f32 v12, v12, v14")
        p("v_add_f32 v13, v13, v15")
    p("ds_write_b64 v6, v[12:13]")
    p("s_waitcnt lgkmcnt(0)")
    p("s_barrier")
    for w in range(7):
        p("ds_read_b64 v[%d:%d], v7 offset:%d" % (16 + 2 * w, 17 + 2 * w, 64 * w))
    for w in range(1, 7):
        p("v_pk_add_f32 v[16:17], v[16:17], v[%d:%d]" % (16 + 2 * w, 17 + 2 * w))
    p("v_mul_f32 v16, 0x%08x, v16" % f2u(1.0 / 448))
    p("v_mov_b32 v18, 0x%08x" % f2u(1e-5))
    p("v_fmac_f32 v18, 0x%08x, v17" % f2u(1.0 / 448))
    p("v_fma_f32 v18, -v16, v16, v18")
    p("v_max_f32 v18, 0x%08x, v18" % f2u(1e-5))
    p("v_rsq_f32 v18, v18")
    p("v_mul_f32 v16, -1.0, v16")
    p("v_mov_b32 v17, v16")
    p("v_mov_b32 v19, v18")
    for d in range(4):
        p("v_pk_add_f32 v[%d:%d], v[%d:%d], v[16:17]" % (ACC + 2 * d, ACC + 2 * d + 1, ACC + 2 * d, ACC + 2 * d + 1))
        p("v_pk_mul_f32 v[%d:%d], v[%d:%d], v[18:19]" % (C1 + 2 * d, C1 + 2 * d + 1, C1 + 2 * d, C1 + 2 * d + 1))
    for d in range(4):
        p("v_pk_fma_f32 v[%d:%d], v[%d:%d], v[%d:%d], v[%d:%d]" % (ACC + 2 * d, ACC + 2 * d + 1, ACC + 2 * d, ACC + 2 * d + 1, C1 + 2 * d, C1 + 2 * d + 1, SB + 2 * d, SB + 2 * d + 1))
    for d in range(4):
        p("v_cvt_pk_bf16_f32 v%d, v%d, v%d" % (20 + d, ACC + 2 * d, ACC + 2 * d + 1))
    p("buffer_store_dwordx4 v[20:23], v3, s[12:15], s22 offen")
    p.stamp(2)
    p("K2A_END:", "nowait")
    p("s_endpgm")
    return p
```

```python
from fw import *
from layout import *
from sched import *
from k0 import f2u
import math

SLOT = 17408
XB = 8 * SLOT
H2L = 4 * SLOT
LDS_K2B = XB + 8192
C1 = -2.0 * math.sqrt(2.0 / math.pi) * math.log2(math.e)
C2 = C1 * 0.044715

def gelu_pair(x, t, SC):
    X = "v[%d:%d]" % (x, x + 1); T = "v[%d:%d]" % (t, t + 1)
    return ["v_pk_mul_f32 %s, %s, %s" % (T, X, X),
            "v_pk_fma_f32 %s, %s, s[%d:%d], v[%d:%d]" % (T, T, SC[0], SC[0] + 1, SC[1], SC[1] + 1),
            "v_pk_mul_f32 %s, %s, %s" % (T, T, X),
            "v_exp_f32 v%d, v%d" % (t, t),
            "v_exp_f32 v%d, v%d" % (t + 1, t + 1),
            "v_pk_add_f32 %s, %s, 1.0 op_sel_hi:[1,0]" % (T, T),
            "v_rcp_f32 v%d, v%d" % (t, t),
            "v_rcp_f32 v%d, v%d" % (t + 1, t + 1),
            "v_pk_mul_f32 %s, %s, %s" % (X, X, T)]

def interleave(seqs):
    out = []
    n = max(len(s) for s in seqs)
    for k in range(n):
        for s in seqs:
            if k < len(s): out.append(s[k])
    return out

def gen_k2b(D=4, budget=24):
    p = Prog()
    V_L16, V_G1, V_G2 = 1, 2, 6
    V_A1E, V_A1O, V_A2E, V_A2O, V_A2M = 9, 12, 15, 18, 21
    V_HE, V_HO, V_XW, V_XR, V_Z2, V_Z24, V_ST, V_PL = 24, 25, 26, 27, 28, 29, 30, 31
    ACC1, ACC2, ACC5 = 32, 64, 80
    TMP = 96
    V_C1 = 112
    V_SUM, V_SQ, V_SUMB, V_SQB = 114, 116, 118, 120
    PL = 124
    PK = 140
    V_SC, V_BI, V_SC4, V_BI4 = 156, 158, 160, 162
    A_H, A_FR, NB = 0, 112, 8
    S_W, S_FB, S_TB, S_C, S_I = 3, 4, 5, 6, 7
    SRD_WS, SRD_WI = 8, 12
    S_O1, S_O2, S_M1, S_M2, S_C2, S_MSK, S_Z1, S_Z2, S_STO, S_CM, S_CNT = 16, 17, 18, 19, 20, 22, 23, 24, 25, 26, 28
    p("s_cmp_ge_u32 s2, 256")
    p("s_cbranch_scc1 K2B_END")
    p("s_load_dwordx2 s[40:41], s[0:1], %d" % A_WS)
    p("s_load_dwordx2 s[42:43], s[0:1], %d" % A_WIN)
    p("v_lshrrev_b32 v96, 6, v0")
    p("v_and_b32 v0, 63, v0")
    p("v_readfirstlane_b32 s%d, v96" % S_W)
    p("s_and_b32 s30, s2, 7")
    p("s_lshl_b32 s30, s30, 2")
    p("s_lshr_b32 s31, s2, 6")
    p("s_add_u32 s%d, s30, s31" % S_TB)
    p("s_bfe_u32 s%d, s2, 0x30003" % S_FB)
    p("v_lshlrev_b32 v%d, 4, v0" % V_L16)
    p("s_and_b32 s%d, s%d, 1" % (S_C, S_W))
    p("s_lshr_b32 s%d, s%d, 1" % (S_I, S_W))
    srd(p, SRD_WS, 40, WS_END)
    p("s_mul_i32 s30, s%d, 14336" % S_W)
    p("s_mul_i32 s31, s%d, 57344" % S_TB)
    p("s_add_u32 s31, s31, s30")
    p("s_add_u32 s31, s31, %d" % H2)
    for e in range(14):
        if e % 4 == 0:
            if e: p("s_add_u32 s31, s31, 4096")
            p("s_add_u32 m0, s30, %d" % (H2L + 4096 * (e // 4)))
        p("buffer_load_dwordx4 v%d, s[8:11], s31 offen offset:%d lds" % (V_L16, (e % 4) * 1024), "h2")
    srd(p, SRD_WI, 42, 448 * 3584)
    p("v_lshrrev_b32 v96, 4, v0")
    p("v_mul_u32_u24 v%d, %d, v96" % (V_G1, 8 * 3584))
    p("v_and_b32 v97, 15, v0")
    p("v_lshlrev_b32 v98, 4, v97")
    p("v_add_u32 v99, 1792, v98")
    p("v_add_u32 v98, %d, v98" % (192 - 224))
    p("v_cmp_gt_u32 vcc, 14, v97")
    p("v_cndmask_b32 v98, v98, v99, vcc")
    p("v_add_u32 v%d, v%d, v98" % (V_G1, V_G1))
    for e in range(1, 4): p("v_add_u32 v%d, %d, v%d" % (V_G1 + e, e * 3584, V_G1))
    p("s_lshl_b32 s30, s%d, 5" % S_I)
    p("s_lshl_b32 s31, s%d, 2" % S_C)
    p("s_add_u32 s30, s30, s31")
    p("s_mul_i32 s%d, s30, 3584" % S_O1)
    p("s_mul_i32 s31, s%d, 224" % S_FB)
    p("s_add_u32 s%d, s%d, s31" % (S_O1, S_O1))
    p("s_mul_i32 s%d, s%d, %d" % (S_O2, S_W, 16 * 3584))
    p("s_add_u32 s%d, s%d, s31" % (S_O2, S_O2))
    p("s_mul_i32 s%d, s%d, 4352" % (S_M1, S_W))
    p("s_mul_i32 s%d, s%d, 3072" % (S_M2, S_W))
    NS = 14
    def slot_of(k): return (k % 8) * SLOT
    def pieces(k):
        out = []
        so = slot_of(k)
        if k < 7:
            for e in range(4):
                pre = ["s_add_u32 s%d, s%d, %d" % (S_O1, S_O1, 64 * 3584)] if (e == 0 and k > 0) else []
                out.append((pre, "s_add_u32 m0, s%d, %d" % (S_M1, so + e * 1088),
                            "buffer_load_dwordx4 v%d, s[12:15], s%d offen lds" % (V_G1 + e, S_O1), ("slab", k)))
        else:
            for e in range(3):
                pre = ["s_add_u32 s%d, s%d, %d" % (S_O2, S_O2, 64 * 3584)] if (e == 0 and k > 7) else []
                out.append((pre, "s_add_u32 m0, s%d, %d" % (S_M2, so + e * 1024),
                            "buffer_load_dwordx4 v%d, s[12:15], s%d offen lds" % (V_G2 + e, S_O2), ("slab", k)))
        return out
    for k in range(4):
        for (pre, m0, ld, tag) in pieces(k):
            for t in pre: p(t)
            p(m0); p(ld, tag)
    for e in range(3):
        p("v_add_u32 v96, %d, v0" % (64 * e))
        p("v_mul_u32_u24 v97, 171, v96")
        p("v_lshrrev_b32 v97, 11, v97")
        p("v_mul_u32_u24 v98, 12, v97")
        p("v_sub_u32 v98, v96, v98")
        p("v_mul_u32_u24 v97, 3584, v97")
        p("v_lshl_add_u32 v%d, v98, 4, v97" % (V_G2 + e))
    p("v_bfe_u32 v96, v0, 2, 2")
    p("v_lshrrev_b32 v97, 5, v0")
    p("v_and_b32 v98, 1, v0")
    p("v_bfe_u32 v99, v0, 1, 1")
    p("v_bfe_u32 v100, v0, 4, 1")
    p("v_mul_u32_u24 v101, 1088, v96")
    p("v_lshl_add_u32 v101, v97, 8, v101")
    p("v_lshl_add_u32 v101, v100, 5, v101")
    p("v_lshl_add_u32 v101, v98, 4, v101")
    p("v_lshl_add_u32 v101, v99, 3, v101")
    p("s_mul_i32 s30, s%d, %d" % (S_C, 128 + 512))
    p("v_add_u32 v%d, s30, v101" % V_A1E)
    p("s_mul_i32 s30, s%d, %d" % (S_C, 128 - 512))
    p("s_add_u32 s30, s30, 512")
    p("v_add_u32 v%d, s30, v101" % V_A1O)
    p("v_lshl_add_u32 v101, v97, 3, v96")
    p("v_mul_u32_u24 v101, 192, v101")
    p("v_lshl_add_u32 v101, v99, 5, v101")
    p("v_lshl_add_u32 v101, v98, 3, v101")
    p("v_lshl_add_u32 v102, v100, 4, v101")
    p("s_mul_i32 s30, s%d, %d" % (S_C, 128 + 3072))
    p("v_add_u32 v%d, s30, v102" % V_A2E)
    p("s_mul_i32 s30, s%d, %d" % (S_C, 128 - 3072))
    p("s_add_u32 s30, s30, 3072")
    p("v_add_u32 v%d, s30, v102" % V_A2O)
    p("v_xor_b32 v100, s%d, v100" % S_C)
    p("v_lshl_add_u32 v102, v100, 4, v101")
    p("s_mul_i32 s30, s%d, 3072" % S_C)
    p("s_add_u32 s30, s30, 64")
    p("v_add_u32 v%d, s30, v102" % V_A2M)
    for b in (V_A1E, V_A1O, V_A2E, V_A2O, V_A2M):
        p("v_add_u32 v%d, %d, v%d" % (b + 1, 3 * SLOT, b))
        p("v_add_u32 v%d, %d, v%d" % (b + 2, 6 * SLOT, b))
    p("s_mul_i32 s30, s%d, 28672" % S_I)
    p("s_add_u32 s30, s30, %d" % H2L)
    p("s_lshl_b32 s31, s%d, 10" % S_C)
    p("s_add_u32 s32, s30, s31")
    p("v_add_u32 v%d, s32, v%d" % (V_HE, V_L16))
    p("s_sub_u32 s32, s30, s31")
    p("v_add_u32 v%d, s32, v%d" % (V_HO, V_L16))
    p("s_lshl_b32 s30, s%d, 11" % S_W)
    p("s_add_u32 s30, s30, %d" % XB)
    p("v_add_u32 v%d, s30, v%d" % (V_XW, V_L16))
    p("v_xor_b32 v%d, 2048, v%d" % (V_XR, V_XW))
    p("s_mov_b32 s%d, 0x%08x" % (S_C2, f2u(C2)))
    p("s_mov_b32 s%d, 0x%08x" % (S_C2 + 1, f2u(C2)))
    p("v_mov_b32 v%d, 0x%08x" % (V_C1, f2u(C1)))
    p("v_mov_b32 v%d, 0x%08x" % (V_C1 + 1, f2u(C1)))
    p("s_cmp_eq_u32 s%d, 0" % S_C)
    p("s_cselect_b32 s%d, 1.0, 0" % S_MSK)
    p("s_cselect_b64 s[%d:%d], 0, -1" % (S_CM, S_CM + 1))
    p("s_lshl_b32 s33, s%d, 1" % S_TB)
    p("s_add_u32 s33, s33, s%d" % S_I)
    p("s_mul_i32 s30, s33, 57344")
    p("s_mul_i32 s31, s%d, 7168" % S_FB)
    p("s_add_u32 s30, s30, s31")
    p("s_add_u32 s30, s30, %d" % Z1)
    p("s_lshl_b32 s31, s%d, 12" % S_C)
    p("s_add_u32 s%d, s30, s31" % S_Z1)
    p("s_lshl_b32 s31, s%d, 10" % S_C)
    p("s_add_u32 s34, s30, s31")
    p("v_and_b32 v96, 19, v0")
    p("v_and_b32 v97, 4, v0")
    p("v_lshl_add_u32 v96, v97, 1, v96")
    p("v_and_b32 v97, 8, v0")
    p("v_lshrrev_b32 v97, 1, v97")
    p("v_add_u32 v96, v96, v97")
    p("v_mul_u32_u24 v96, 224, v96")
    p("v_lshrrev_b32 v97, 5, v0")
    p("v_lshl_add_u32 v%d, v97, 4, v96" % V_Z2)
    p("s_mul_i32 s31, s%d, 458752" % S_FB)
    p("s_mul_i32 s32, s33, 7168")
    p("s_add_u32 s31, s31, s32")
    p("s_lshl_b32 s32, s%d, 7" % S_C)
    p("s_add_u32 s31, s31, s32")
    p("s_add_u32 s%d, s31, %d" % (S_Z2, Z2N))
    p("s_add_u32 s30, s30, %d" % (12 * 512))
    p("v_add_u32 v96, s30, v%d" % V_L16)
    p("s_add_u32 s31, s%d, 96" % S_Z2)
    p("v_add_u32 v97, s31, v%d" % V_Z2)
    p("v_cndmask_b32 v%d, v97, v96, s[%d:%d]" % (V_Z24, S_CM, S_CM + 1))
    p("s_lshl_b32 s31, s33, 12")
    p("s_add_u32 s35, s31, %d" % STATS)
    p("s_lshl_b32 s31, s%d, 1" % S_FB)
    p("s_add_u32 s31, s31, s%d" % S_C)
    p("s_lshl_b32 s31, s31, 8")
    p("s_add_u32 s%d, s35, s31" % S_STO)
    p("v_and_b32 v96, 31, v0")
    p("v_lshlrev_b32 v96, 3, v96")
    p("v_lshrrev_b32 v97, 5, v0")
    p("v_lshl_add_u32 v%d, v97, 11, v96" % V_PL)
    p("v_lshl_add_u32 v%d, v97, 31, v96" % V_ST)

    def win(a):
        w = a // (3 * SLOT); return w, a - w * 3 * SLOT
    mf = []
    for s in range(28):
        w, off = win(slot_of(s // 4))
        for tt in range(2):
            reg = (V_A1O if s & 1 else V_A1E) + w
            mf.append(dict(slab=s // 4, acc=ACC1 + 16 * tt, first=(s == 0), B=A_H + 4 * s,
                           reads=[(reg, off + (8 * ((s // 2) % 2) + 4 * q) * 1088 + 64 * tt) for q in range(2)]))
    G1 = len(mf)
    for s in range(28):
        k = 7 + s // 4
        w, off = win(slot_of(k))
        o = off + ((s // 2) % 2) * 32 * 192
        if s % 2 == 0:
            mf.append(dict(slab=k, acc=ACC5, first=(s == 0), B=A_H + 4 * s, reads=[(V_A2M + w, o + 4 * q * 192) for q in range(2)]))
        reg = (V_A2O if s & 1 else V_A2E) + w
        mf.append(dict(slab=k, acc=ACC2, first=(s == 0), B=A_H + 4 * s, reads=[(reg, o + 4 * q * 192) for q in range(2)]))
    N = len(mf)
    last_use = {}
    for n, m in enumerate(mf): last_use[m["slab"]] = n

    sc = Sched(p, budget)
    SC = (S_C2, V_C1)
    rdy = G1 + 2
    for blk in range(4):
        seqs = [gelu_pair(ACC1 + 8 * blk + 2 * j, TMP + 2 * j, SC) for j in range(4)]
        for t in interleave(seqs): sc.filler(t, rdy)
        su, sq = (V_SUM, V_SQ) if blk < 3 else (V_SUMB, V_SQB)
        for j in range(4):
            X = "v[%d:%d]" % (ACC1 + 8 * blk + 2 * j, ACC1 + 8 * blk + 2 * j + 1)
            if blk in (0, 3) and j == 0:
                sc.filler("v_pk_mul_f32 v[%d:%d], %s, %s" % (sq, sq + 1, X, X), rdy)
            else:
                if blk in (0, 3) and j == 1:
                    sc.filler("v_pk_add_f32 v[%d:%d], v[%d:%d], %s" % (su, su + 1, ACC1 + 8 * blk, ACC1 + 8 * blk + 1, X), rdy)
                else:
                    sc.filler("v_pk_add_f32 v[%d:%d], v[%d:%d], %s" % (su, su + 1, su, su + 1, X), rdy)
                sc.filler("v_pk_fma_f32 v[%d:%d], %s, %s, v[%d:%d]" % (sq, sq + 1, X, X, sq, sq + 1), rdy)
    for t in ["v_add_f32 v%d, v%d, v%d" % (V_SUM, V_SUM, V_SUM + 1),
              "v_add_f32 v%d, v%d, v%d" % (V_SUMB, V_SUMB, V_SUMB + 1),
              "v_add_f32 v%d, v%d, v%d" % (V_SUM + 1, V_SQ, V_SQ + 1),
              "v_add_f32 v%d, v%d, v%d" % (V_SQB, V_SQB, V_SQB + 1),
              "v_fmac_f32 v%d, s%d, v%d" % (V_SUM, S_MSK, V_SUMB),
              "v_fmac_f32 v%d, s%d, v%d" % (V_SUM + 1, S_MSK, V_SQB),
              "v_mov_b32 v%d, v%d" % (V_SQ, V_SUM),
              "v_mov_b32 v%d, v%d" % (V_SQ + 1, V_SUM + 1),
              "v_permlane32_swap_b32 v%d, v%d" % (V_SUM, V_SQ),
              "v_permlane32_swap_b32 v%d, v%d" % (V_SUM + 1, V_SQ + 1),
              "v_pk_add_f32 v[%d:%d], v[%d:%d], v[%d:%d]" % (V_SUM, V_SUM + 1, V_SUM, V_SUM + 1, V_SQ, V_SQ + 1),
              "v_max_f32 v%d, 0, v%d" % (V_SUM + 1, V_SUM + 1),
              "buffer_store_dwordx2 v[%d:%d], v%d, s[8:11], s%d offen sc1" % (V_SUM, V_SUM + 1, V_ST, S_STO)]:
        sc.filler(t, rdy, tag="st")

    landed = set(); certified = set()
    dmaq = deque()
    st = dict(issued=4, nbar=0)
    def barrier(n, slab):
        p.wait_vm(("slab", slab))
        if st["nbar"] == 1: p.wait_lgkm("h2r")
        p("s_barrier")
        st["nbar"] += 1
        landed.add(slab)
        for s_, lu in last_use.items():
            if lu <= n: certified.add(s_)
        while st["issued"] < NS:
            k = st["issued"]
            if k >= 8 and (k - 8) not in certified: break
            if k < 8 and st["nbar"] < 2: break
            for pc in pieces(k): dmaq.append(pc)
            st["issued"] += 1
    def emit_reads(n, cur):
        m = mf[n]; used = 0
        if m["slab"] not in landed:
            while dmaq and dmaq[0][3][1] <= m["slab"]:
                pre, m0, ld, tag = dmaq.popleft()
                for t in pre: p(t)
                p(m0); p(ld, tag)
            barrier(cur, m["slab"]); used += 8
        fb = A_FR + 4 * (n % NB)
        return ["ds_read_b64_tr_b16 a[%d:%d], v%d offset:%d" % (fb + 2 * q, fb + 2 * q + 1, r, o) for q, (r, o) in enumerate(m["reads"])], used
    for n in range(D):
        txt, _ = emit_reads(n, -1)
        if n == 0:
            for s in range(4):
                p("ds_read_b128 a[%d:%d], v%d offset:%d" % (A_H + 4 * s, A_H + 4 * s + 3, V_HO if s & 1 else V_HE, 1024 * s), "h2r")
        for t in txt: p(t)
    for s in range(4, 28):
        p("ds_read_b128 a[%d:%d], v%d offset:%d" % (A_H + 4 * s, A_H + 4 * s + 3, V_HO if s & 1 else V_HE, 1024 * s), "h2r")
    for n in range(N):
        m = mf[n]
        if n in (0, G1): p.stamp((0, G1).index(n))
        fb = A_FR + 4 * (n % NB)
        acc = "v[%d:%d]" % (m["acc"], m["acc"] + 15)
        p("v_mfma_f32_32x32x16_bf16 %s, a[%d:%d], a[%d:%d], %s" % (acc, fb, fb + 3, m["B"], m["B"] + 3, "0" if m["first"] else acc))
        used = 2; txt = []
        if n + D < N:
            txt, u = emit_reads(n + D, n); used += u
        for _ in range(2 if len(dmaq) > 4 else 1):
            if dmaq:
                pc = dmaq.popleft()
                for t in pc[0]: p(t); used += 4
                p(pc[1]); used += 4
                if txt: p(txt.pop(0)); used += 4
                p(pc[2], pc[3]); used += 4
        for t in txt: p(t); used += 4
        sc.fill_gap(n, used)
    sc.flush_all()
    assert not dmaq and st["issued"] == NS
    p.stamp(2)
    def poll_loads():
        for n in range(8):
            p("buffer_load_dwordx2 v[%d:%d], v%d, s[8:11], s35 offen offset:%d sc1" % (PL + 2 * n, PL + 2 * n + 1, V_PL, 256 * n), "poll")
    p("ds_write_b128 v%d, v[%d:%d]" % (V_XW, ACC5 + 8, ACC5 + 11), "xw")
    p("ds_write_b128 v%d, v[%d:%d] offset:1024" % (V_XW, ACC5 + 12, ACC5 + 15), "xw")
    poll_loads()
    p.wait_lgkm("xw")
    p("s_barrier")
    p("ds_read_b128 v[%d:%d], v%d" % (ACC5 + 8, ACC5 + 11, V_XR))
    p("ds_read_b128 v[%d:%d], v%d offset:1024" % (ACC5 + 12, ACC5 + 15, V_XR))
    for blk in range(2):
        for t in interleave([gelu_pair(ACC2 + 8 * blk + 2 * j, TMP + 2 * j, SC) for j in range(4)]): p(t)
        for j in range(4):
            p("v_cvt_pk_bf16_f32 v%d, v%d, v%d" % (PK + 4 * blk + j, ACC2 + 8 * blk + 2 * j, ACC2 + 8 * blk + 2 * j + 1))
        p("buffer_store_dwordx4 v[%d:%d], v%d, s[8:11], s%d offen offset:%d" % (PK + 4 * blk, PK + 4 * blk + 3, V_L16, S_Z1, 1024 * blk))
    for j in range(4):
        p("v_pk_add_f32 v[%d:%d], v[%d:%d], v[%d:%d]" % (ACC5 + 2 * j, ACC5 + 2 * j + 1, ACC5 + 2 * j, ACC5 + 2 * j + 1, ACC5 + 8 + 2 * j, ACC5 + 9 + 2 * j))
    for t in interleave([gelu_pair(ACC5 + 2 * j, TMP + 2 * j, SC) for j in range(4)]): p(t)
    for j in range(4):
        p("v_cvt_pk_bf16_f32 v%d, v%d, v%d" % (PK + 8 + j, ACC5 + 2 * j, ACC5 + 2 * j + 1))
    p("buffer_store_dwordx4 v[%d:%d], v%d, s[8:11], s34 offen offset:2048" % (PK + 8, PK + 11, V_L16))
    p.stamp(3)
    p("s_movk_i32 s%d, 0x4000" % S_CNT)
    def check():
        p("v_max3_u32 v%d, v%d, v%d, v%d" % (TMP, PL + 1, PL + 3, PL + 5))
        p("v_max3_u32 v%d, v%d, v%d, v%d" % (TMP + 1, PL + 7, PL + 9, PL + 11))
        p("v_max3_u32 v%d, v%d, v%d, v%d" % (TMP, TMP, PL + 13, PL + 15))
        p("v_max_u32 v%d, v%d, v%d" % (TMP, TMP, TMP + 1))
        p("v_cmp_eq_u32 vcc, -1, v%d" % TMP)
    check()
    p("s_cbranch_vccz K2B_GOT", "nowait")
    p("K2B_POLL:", "nowait")
    poll_loads()
    p("s_waitcnt vmcnt(0)")
    check()
    p("s_sub_u32 s%d, s%d, 1" % (S_CNT, S_CNT))
    p("s_cbranch_scc1 K2B_GOT", "nowait")
    p("s_cbranch_vccnz K2B_POLL", "nowait")
    p("K2B_GOT:", "nowait")
    p.stamp(4)
    for n in range(1, 8):
        p("v_pk_add_f32 v[%d:%d], v[%d:%d], v[%d:%d]" % (PL, PL + 1, PL, PL + 1, PL + 2 * n, PL + 2 * n + 1))
    p("v_mov_b32 v%d, v%d" % (PL + 2, PL))
    p("v_mov_b32 v%d, v%d" % (PL + 3, PL + 1))
    p("v_permlane32_swap_b32 v%d, v%d" % (PL, PL + 2))
    p("v_permlane32_swap_b32 v%d, v%d" % (PL + 1, PL + 3))
    p("v_pk_add_f32 v[%d:%d], v[%d:%d], v[%d:%d]" % (PL, PL + 1, PL, PL + 1, PL + 2, PL + 3))
    p("v_mul_f32 v%d, 0x%08x, v%d" % (PL, f2u(1.0 / 896), PL))
    p("v_mov_b32 v%d, 0x%08x" % (V_SC, f2u(1e-5)))
    p("v_fmac_f32 v%d, 0x%08x, v%d" % (V_SC, f2u(1.0 / 896), PL + 1))
    p("v_fma_f32 v%d, -v%d, v%d, v%d" % (V_SC, PL, PL, V_SC))
    p("v_max_f32 v%d, 0x%08x, v%d" % (V_SC, f2u(1e-5), V_SC))
    p("v_rsq_f32 v%d, v%d" % (V_SC, V_SC))
    p("v_mul_f32 v%d, v%d, -v%d" % (V_BI, V_SC, PL))
    p("v_cndmask_b32 v%d, v%d, 1.0, s[%d:%d]" % (V_SC4, V_SC, S_CM, S_CM + 1))
    p("v_cndmask_b32 v%d, v%d, 0, s[%d:%d]" % (V_BI4, V_BI, S_CM, S_CM + 1))
    for blk in range(4):
        a, b = (V_SC, V_BI) if blk < 3 else (V_SC4, V_BI4)
        for j in range(4):
            X = "v[%d:%d]" % (ACC1 + 8 * blk + 2 * j, ACC1 + 8 * blk + 2 * j + 1)
            p("v_pk_fma_f32 %s, %s, v[%d:%d], v[%d:%d] op_sel_hi:[1,0,0]" % (X, X, a, a + 1, b, b + 1))
        for j in range(4):
            p("v_cvt_pk_bf16_f32 v%d, v%d, v%d" % (64 + 4 * blk + j, ACC1 + 8 * blk + 2 * j, ACC1 + 8 * blk + 2 * j + 1))
        if blk < 3:
            p("buffer_store_dwordx4 v[%d:%d], v%d, s[8:11], s%d offen offset:%d" % (64 + 4 * blk, 67 + 4 * blk, V_Z2, S_Z2, 32 * blk))
        else:
            p("buffer_store_dwordx4 v[%d:%d], v%d, s[8:11], 0 offen" % (64 + 4 * blk, 67 + 4 * blk, V_Z24))
    p("K2B_END:", "nowait")
    p("s_endpgm")
    return p
```

```python
from fw import *
from layout import *

WREG = 28672
LDS_K4 = 4 * WREG

def gen_k4():
    p = Prog()
    V_L16, V_P1, V_P2, V_A, V_XW, V_XR, V_GB, V_O = 1, 2, 3, 4, 6, 7, 10, 11
    ACC, RED, X2R, GB = 32, 96, 144, 152
    A_B, A_FR, NB = 0, 112, 8
    S_W, S_TB, S_DB, S_U0, S_U1, S_WO, S_LB = 3, 4, 5, 20, 21, 22, 23
    p("s_cmp_ge_u32 s2, 224")
    p("s_cbranch_scc1 K4_END")
    p("s_load_dwordx2 s[40:41], s[0:1], %d" % A_WS)
    p("s_load_dwordx2 s[42:43], s[0:1], %d" % A_WOUT)
    p("s_load_dwordx2 s[44:45], s[0:1], %d" % A_OUT)
    p.stamp(4)
    p("v_lshrrev_b32 v20, 6, v0")
    p("v_and_b32 v0, 63, v0")
    p("v_readfirstlane_b32 s%d, v20" % S_W)
    p("s_and_b32 s30, s2, 7")
    p("s_lshl_b32 s30, s30, 2")
    p("s_bfe_u32 s31, s2, 0x20003")
    p("s_add_u32 s%d, s30, s31" % S_TB)
    p("s_lshr_b32 s%d, s2, 5" % S_DB)
    p("v_lshlrev_b32 v%d, 4, v0" % V_L16)
    p("v_lshrrev_b32 v20, 3, v0")
    p("v_and_b32 v21, 7, v0")
    p("v_bfe_u32 v22, v0, 4, 1")
    p("v_lshlrev_b32 v22, 2, v22")
    p("v_xor_b32 v21, v21, v22")
    p("v_lshlrev_b32 v21, 4, v21")
    p("v_mul_u32_u24 v22, 896, v20")
    p("v_add_u32 v%d, v22, v21" % V_P2)
    p("v_lshrrev_b32 v22, 5, v0")
    p("v_mul_u32_u24 v22, %d, v22" % (12 * 896))
    p("v_add_u32 v%d, v22, v%d" % (V_P1, V_P2))
    p("s_lshr_b32 s30, s%d, 1" % S_W)
    p("s_lshl_b32 s31, s%d, 1" % S_TB)
    p("s_add_u32 s33, s31, s30")
    p("s_xor_b32 s32, s33, 1")
    p("s_mul_i32 s34, s%d, 14336" % S_W)
    p("s_add_u32 s34, s34, %d" % U)
    p("s_mul_i32 s%d, s33, 57344" % S_U0)
    p("s_add_u32 s%d, s%d, s34" % (S_U0, S_U0))
    p("s_mul_i32 s%d, s32, 57344" % S_U1)
    p("s_add_u32 s%d, s%d, s34" % (S_U1, S_U1))
    p("s_mul_i32 s%d, s%d, %d" % (S_WO, S_W, 224 * 896))
    p("s_lshl_b32 s31, s%d, 7" % S_DB)
    p("s_add_u32 s%d, s%d, s31" % (S_WO, S_WO))
    p("s_mul_i32 s%d, s%d, %d" % (S_LB, S_W, WREG))
    srd(p, 8, 40, WS_END)
    srd(p, 12, 42, 896 * 896)
    srd(p, 16, 44, 2048 * 896)
    for ks in range(14):
        for e in range(2):
            pi = 2 * ks + e
            ch = pi % 14
            base = 112 * (pi // 14) + (32 * (ch // 4) + 4 * (ch % 4) if ch < 12 else 96 + 8 * (ch - 12))
            p("s_add_u32 s35, s%d, %d" % (S_WO, base * 896))
            p("s_add_u32 m0, s%d, %d" % (S_LB, 1024 * pi))
            p("buffer_load_dwordx4 v%d, s[12:15], s35 offen lds" % (V_P1 if ch < 12 else V_P2), ("ks", ks))
        if ks and ks % 4 == 0:
            p("s_add_u32 s%d, s%d, 4096" % (S_U0, S_U0))
            p("s_add_u32 s%d, s%d, 4096" % (S_U1, S_U1))
        for i in range(2):
            b = A_B + 8 * ks + 4 * i
            p("buffer_load_dwordx4 a[%d:%d], v%d, s[8:11], s%d offen offset:%d" % (b, b + 3, V_L16, S_U0 + i, (ks % 4) * 1024))
    p("v_bfe_u32 v20, v0, 2, 2")
    p("v_lshlrev_b32 v20, 7, v20")
    p("v_lshrrev_b32 v21, 5, v0")
    p("v_lshl_add_u32 v20, v21, 10, v20")
    p("v_bfe_u32 v21, v0, 4, 1")
    p("v_lshl_add_u32 v20, v21, 5, v20")
    p("v_and_b32 v21, 1, v0")
    p("v_lshl_add_u32 v20, v21, 4, v20")
    p("v_bfe_u32 v21, v0, 1, 1")
    p("v_lshl_add_u32 v20, v21, 3, v20")
    p("v_bfe_u32 v21, v0, 3, 1")
    p("s_and_b32 s36, s%d, 1" % S_W)
    p("v_xor_b32 v21, s36, v21")
    p("v_lshl_add_u32 v20, v21, 6, v20")
    p("v_add_u32 v%d, s%d, v20" % (V_A, S_LB))
    p("v_xor_b32 v%d, 64, v%d" % (V_A + 1, V_A))
    p("v_add_u32 v%d, s%d, v%d" % (V_XW, S_LB, V_L16))
    for r in range(1, 4):
        p("s_xor_b32 s30, s%d, %d" % (S_W, r))
        p("s_mul_i32 s30, s30, %d" % WREG)
        p("v_add_u32 v%d, s30, v%d" % (V_XR + r - 1, V_L16))
    p("v_lshrrev_b32 v21, 5, v0")
    p("v_lshlrev_b32 v%d, 5, v21" % V_GB)
    p("v_and_b32 v20, 31, v0")
    p("v_mul_u32_u24 v20, 896, v20")
    p("v_lshl_add_u32 v%d, v21, 4, v20" % V_O)
    p("s_lshl_b32 s37, s%d, 1" % S_DB)
    p("s_add_u32 s37, s37, s36")
    p("s_mul_i32 s38, s33, 28672")
    p("s_lshl_b32 s30, s37, 11")
    p("s_add_u32 s30, s30, s38")
    p("s_add_u32 s30, s30, %d" % X2)
    p("s_lshl_b32 s31, s37, 7")
    p("s_add_u32 s31, s31, %d" % (MOD + 5 * 1792))
    p("s_lshl_b32 s39, s37, 6")
    p("s_add_u32 s39, s39, s38")
    epi = ["buffer_load_dwordx4 v[%d:%d], v%d, s[8:11], s30 offen offset:%d" % (X2R + 4 * e, X2R + 4 * e + 3, V_L16, 1024 * e) for e in range(2)]
    epi += ["buffer_load_dwordx4 v[%d:%d], v%d, s[8:11], s31 offen offset:%d" % (GB + 4 * e, GB + 4 * e + 3, V_GB, 64 * (e // 2) + 16 * (e % 2)) for e in range(4)]
    def reads(ks):
        L = []
        for dt in range(2):
            fb = A_FR + 4 * ((2 * ks + dt) % NB)
            for q in range(2):
                L.append("ds_read_b64_tr_b16 a[%d:%d], v%d offset:%d" % (fb + 2 * q, fb + 2 * q + 1, V_A + dt, 2048 * ks + 512 * q))
        return L
    p.stamp(0)
    p.wait_vm(("ks", 0))
    p.stamp(1)
    for t in reads(0): p(t)
    for ks in range(14):
        rd = []
        if ks + 1 < 14:
            p.wait_vm(("ks", ks + 1))
            rd = reads(ks + 1)
        order = (1, 2, 3, 0) if ks == 13 else (0, 2, 1, 3)
        for r in order:
            fb = A_FR + 4 * ((2 * ks + (r & 1)) % NB)
            b = A_B + 8 * ks + 4 * (r >> 1)
            acc = "v[%d:%d]" % (ACC + 16 * r, ACC + 16 * r + 15)
            p("v_mfma_f32_32x32x16_bf16 %s, a[%d:%d], a[%d:%d], %s" % (acc, fb, fb + 3, b, b + 3, "0" if ks == 0 else acc))
            if rd: p(rd.pop(0))
            if ks >= 2 and epi: p(epi.pop(0))
    p.stamp(2)
    for r in range(1, 4):
        for e in range(4):
            p("ds_write_b128 v%d, v[%d:%d] offset:%d" % (V_XW, ACC + 16 * r + 4 * e, ACC + 16 * r + 4 * e + 3, (4 * (r - 1) + e) * 1024), "xw")
    p.wait_lgkm("xw")
    p("s_barrier")
    for e in range(4):
        for r in range(1, 4):
            d = RED + 16 * (r - 1) + 4 * e
            p("ds_read_b128 v[%d:%d], v%d offset:%d" % (d, d + 3, V_XR + r - 1, (4 * (r - 1) + e) * 1024))
    T = 48
    p.stamp(3)
    for d in range(8):
        p("v_lshlrev_b32 v%d, 16, v%d" % (T + 2 * d, X2R + d))
        p("v_and_b32 v%d, 0xffff0000, v%d" % (T + 2 * d + 1, X2R + d))
    pr = lambda b: "v[%d:%d]" % (b, b + 1)
    for e in range(2):
        for d in range(4 * e, 4 * e + 4):
            p("v_pk_add_f32 %s, %s, %s" % (pr(ACC + 2 * d), pr(ACC + 2 * d), pr(RED + 2 * d)))
            p("v_pk_add_f32 %s, %s, %s" % (pr(RED + 16 + 2 * d), pr(RED + 16 + 2 * d), pr(RED + 32 + 2 * d)))
        for d in range(4 * e, 4 * e + 4):
            p("v_pk_add_f32 %s, %s, %s" % (pr(ACC + 2 * d), pr(ACC + 2 * d), pr(RED + 16 + 2 * d)))
        for d in range(4 * e, 4 * e + 4):
            p("v_pk_fma_f32 %s, %s, %s, %s" % (pr(ACC + 2 * d), pr(ACC + 2 * d), pr(GB + 2 * d), pr(T + 2 * d)))
        for d in range(4 * e, 4 * e + 4):
            p("v_cvt_pk_bf16_f32 v%d, v%d, v%d" % (64 + d, ACC + 2 * d, ACC + 2 * d + 1))
        p("buffer_store_dwordx4 v[%d:%d], v%d, s[16:19], s39 offen offset:%d" % (64 + 4 * e, 67 + 4 * e, V_O, 32 * e))
    p("K4_END:", "nowait")
    p("s_endpgm")
    return p
```
